```python
import torch

def _softmax(x, axis=-1):
    return torch.softmax(x, dim=axis)
def _gelu(x):
    return torch.nn.functional.gelu(x, approximate="tanh")
def _silu(x):
    return torch.nn.functional.silu(x)
def _sigmoid(x):
    return torch.sigmoid(x)
def _layernorm(x, axis=-1, eps=1e-5):
    m = x.mean(dim=axis, keepdim=True)
    v = x.var(dim=axis, keepdim=True, unbiased=False)
    return (x - m) / torch.sqrt(v + eps)
def _scatter_add(tgt, idx, src, axis=0):
    return tgt.clone().index_add_(axis, idx, src)
def _segment_sum(src, seg, n):
    out = torch.zeros((n,) + src.shape[1:], dtype=src.dtype)
    return out.index_add_(0, seg, src)
def _pad(x, pw):
    flat = tuple(v for pair in reversed(pw) for v in pair)
    return torch.nn.functional.pad(x, flat)

kernel_name = 'gated_mix__linear_attn_block__ssm_conv_s4d__prompt'

def setup_inputs():

    _w = (lambda a: (lambda t: t.to(torch.bfloat16) if t.is_floating_point() else t)(torch.as_tensor(a)))
    def _A_setup():
        B, S, D = 1, 2048, 576
        return {
            "x": _w((lambda *s: torch.randn(*s, dtype=torch.bfloat16) * 0.05)(B, S, D)),
            "wqkv": _w((lambda *s: torch.randn(*s, dtype=torch.bfloat16) * 0.8)(D, 3 * D)),
            "wo": _w((lambda *s: torch.randn(*s, dtype=torch.bfloat16) * 0.05)(D, D)),
        }
    _A_in = _A_setup()

    def _B_setup():
        Bsz, L, D, N = 1, 2048, 576, 128
        return {
            "u": _w((lambda *s: torch.randn(*s, dtype=torch.bfloat16) * 0.05)(Bsz, L, D)),
            "log_A_real": _w((lambda *s: torch.randn(*s, dtype=torch.bfloat16) * 6.4)(D, N) * 0.5),
            "A_imag": _w((lambda *s: torch.randn(*s, dtype=torch.bfloat16) * 0.05)(D, N) * 3.14),
            "C_real": _w((lambda *s: torch.randn(*s, dtype=torch.bfloat16) * 0.2)(D, N) / N ** 0.5),
            "C_imag": _w((lambda *s: torch.randn(*s, dtype=torch.bfloat16) * 0.2)(D, N) / N ** 0.5),
            "log_dt": _w((lambda *s: torch.randn(*s, dtype=torch.bfloat16) * 0.05)(D) * 0.5 - 4.0),
            "D_skip": _w((lambda *s: torch.randn(*s, dtype=torch.bfloat16) * 0.05)(D)),
        }
    _B_in = _B_setup()

    return {
        "A_x": _A_in["x"],
        "A_wqkv": _A_in["wqkv"],
        "A_wo": _A_in["wo"],
        "B_u": _B_in["u"],
        "B_log_A_real": _B_in["log_A_real"],
        "B_A_imag": _B_in["A_imag"],
        "B_C_real": _B_in["C_real"],
        "B_C_imag": _B_in["C_imag"],
        "B_log_dt": _B_in["log_dt"],
        "B_D_skip": _B_in["D_skip"],
        "gate_w": _w((lambda *s: torch.randn(*s, dtype=torch.bfloat16) * 0.05)(576) * 16.0),
    }

def reference(A_x, A_wqkv, A_wo, B_u, B_log_A_real, B_A_imag, B_C_real, B_C_imag, B_log_dt, B_D_skip, gate_w):
    def _A_ref(x, wqkv, wo):
        B, S, D = x.shape
        H = 32; Dh = D // H
        qkv = (lambda x, *d: x.permute(*d))((x @ wqkv).reshape(B, S, 3, H, Dh), 2, 0, 3, 1, 4)
        q, k, v = qkv[0], qkv[1], qkv[2]
        phi = lambda t: torch.where(t > 0, t + 1, torch.exp(t)) + 1e-6
        pq, pk = phi(q), phi(k)
        kv = torch.einsum("bhsd,bhse->bhde", pk, v)
        z = torch.einsum("bhsd->bhd", pk)
        num = torch.einsum("bhqd,bhde->bhqe", pq, kv)
        den = torch.einsum("bhqd,bhd->bhq", pq, z)[..., None] + 1e-6
        o = num / den
        return (lambda x, *d: x.permute(*d))(o, 0, 2, 1, 3).reshape(B, S, D) @ wo

    def _B_ref(u, log_A_real, A_imag, C_real, C_imag, log_dt, D_skip):
        L = u.shape[1]
        dt = torch.exp(log_dt)
        A = -torch.exp(log_A_real) + 1j * A_imag
        C = (C_real + 1j * C_imag) * dt[:, None]
        pos = (lambda x, dt: x.to(dt))(torch.arange(L), log_dt.dtype)
        P = torch.exp((A * dt[:, None])[:, :, None] * pos[None, None, :])
        K = 2.0 * torch.einsum("dn,dnl->dl", C, P).real
        L2 = 2 * L
        u_t = (lambda x, *d: x.permute(*d))(u, 0, 2, 1)
        Kf = (lambda x, *a, **k: torch.fft.rfft(x.float(), *a, **k))(K, L2)
        Uf = (lambda x, *a, **k: torch.fft.rfft(x.float(), *a, **k))(u_t, L2)
        y = (lambda x, *a, **k: torch.fft.irfft(x, *a, **k).to(torch.bfloat16))(Uf * Kf[None, :, :], L2)[:, :, :L]
        y = (lambda x, *d: x.permute(*d))(y, 0, 2, 1)
        return y + u * D_skip[None, None, :]

    x = A_x
    g = _sigmoid((x * gate_w).sum(-1, keepdims=True))
    a = _A_ref(x, A_wqkv, A_wo)
    b = _B_ref(x, B_log_A_real, B_A_imag, B_C_real, B_C_imag, B_log_dt, B_D_skip)
    return g * a + (1 - g) * b
```

```python
import re

def v(i, n=1):
    return f"v{i}" if n == 1 else f"v[{i}:{i+n-1}]"
def s(i, n=1):
    return f"s{i}" if n == 1 else f"s[{i}:{i+n-1}]"

_reg_re = re.compile(r'(?<![\w.])([vsa])(\d+)(?![\w\[])|(?<![\w.])([vsa])\[(\d+):(\d+)\]|(?<![\w.])(vcc_lo|vcc_hi|vcc|exec_lo|exec_hi|exec|m0|scc)(?![\w])')

def regs_of(op):
    out = []
    for m in _reg_re.finditer(op):
        if m.group(1):
            out.append((m.group(1), int(m.group(2))))
        elif m.group(3):
            out += [(m.group(3), i) for i in range(int(m.group(4)), int(m.group(5)) + 1)]
        else:
            n = m.group(6)
            if n.startswith('vcc'): out.append(('x', 'vcc'))
            elif n.startswith('exec'): out.append(('x', 'exec'))
            else: out.append(('x', n))
    return out

TRANS = ('v_exp_f32', 'v_log_f32', 'v_rcp_f32', 'v_rsq_f32', 'v_sqrt_f32', 'v_sin_f32', 'v_cos_f32', 'v_rcp_iflag_f32')

class Ins:
    __slots__ = ('text', 'op', 'dst', 'src', 'kind', 'srcC', 'srcAB', 'passes', 'dpp', 'lds', 'wide_store', 'ws')
    def __init__(self, text):
        self.text = text
        t = text.split(';')[0].strip()
        parts = t.split(None, 1)
        self.op = op = parts[0]
        rest = parts[1] if len(parts) > 1 else ''
        ops = [o.strip() for o in re.split(r',(?![^\[]*\])', rest)] if rest else []
        self.dst, self.src, self.srcC, self.srcAB = [], [], [], []
        self.passes = 0; self.dpp = ('dpp' in op) or bool(re.search(r'(row_shl|row_shr|row_ror|quad_perm|wave_shl|wave_shr|row_bcast|row_mirror|row_half_mirror|row_newbcast)', rest))
        self.lds = False; self.wide_store = False; self.ws = 1
        R = [regs_of(o) for o in ops]
        flat = lambda L: [r for x in L for r in x]
        if op == 's_nop':
            self.kind = 'salu'; self.ws = int(ops[0], 0) + 1
        elif op.startswith('v_mfma'):
            self.kind = 'mfma'
            self.dst = R[0]; self.srcAB = R[1] + R[2]; self.srcC = R[3]; self.src = self.srcAB + self.srcC
            self.passes = 8 if '32x32' in op else 4
        elif op.startswith('v_cmpx'):
            self.kind = 'valu'; self.dst = R[0] + [('x', 'exec')]; self.src = flat(R[1:])
        elif op.startswith('v_cmp'):
            self.kind = 'valu'; self.dst = R[0]; self.src = flat(R[1:])
        elif op.startswith('v_permlane') or op.startswith('v_swap'):
            self.kind = 'valu'; self.dst = R[0] + R[1]; self.src = R[0] + R[1]
        elif op.startswith(('v_add_co', 'v_sub_co', 'v_addc_co', 'v_subb_co', 'v_div_scale', 'v_mad_u64_u32')):
            self.kind = 'valu'; self.dst = R[0] + R[1]; self.src = flat(R[2:])
        elif op.startswith('v_'):
            self.kind = 'valu'; self.dst = R[0]; self.src = flat(R[1:])
            if op.startswith(('v_fmac', 'v_pk_fmac', 'v_dot2c', 'v_writelane', 'v_fma_mix')) or self.dpp or 'sdwa' in op:
                self.src = self.src + R[0]
            if op == 'v_nop': self.dst = []; self.src = []
        elif op.startswith('ds_'):
            self.kind = 'ds'
            if op.startswith(('ds_read', 'ds_bpermute', 'ds_permute', 'ds_swizzle')) or '_rtn' in op:
                self.dst = R[0]; self.src = flat(R[1:])
                if 'd16' in op: self.src = self.src + R[0]
            else:
                self.src = flat(R)
            if 'addtid' in op: self.src = self.src + [('x', 'm0')]; self.lds = True
        elif op.startswith(('buffer_', 'global_', 'flat_')):
            self.kind = 'vmem'
            is_lds = bool(re.search(r'\blds\b', rest)) or '_lds_' in op
            if is_lds:
                self.src = flat(R) + [('x', 'm0')]; self.lds = True
            elif '_load' in op:
                self.dst = R[0]; self.src = flat(R[1:])
                if 'd16' in op: self.src = self.src + R[0]
            elif 'atomic' in op and re.search(r'\bsc0\b', rest):
                if op.startswith('buffer_'): self.dst = R[0]; self.src = flat(R)
                else: self.dst = R[0]; self.src = flat(R[1:])
            else:
                self.src = flat(R)
                if op.endswith(('x3', 'x4')): self.wide_store = True
        elif op.startswith('s_'):
            self.kind = 'salu'
            if op.startswith(('s_cmp', 's_cbranch', 's_branch', 's_waitcnt', 's_barrier', 's_endpgm', 's_sleep', 's_setprio', 's_bitcmp', 's_setpc')):
                self.src = flat(R)
            else:
                self.dst = R[0] if R else []; self.src = flat(R[1:])
                if 'saveexec' in op: self.dst = self.dst + [('x', 'exec')]
        else:
            raise ValueError('unknown instruction: ' + text)

class Asm:
    def __init__(self):
        self.items = []
    def __call__(self, text):
        for line in text.strip().split('\n'):
            line = line.strip()
            if not line: continue
            if line.startswith(';'):
                self.items.append(('r', '    ' + line)); continue
            self.items.append(('i', Ins(line)))
    def label(self, name):
        self.items.append(('l', name))
    def raw(self, text):
        self.items.append(('r', text))
    def comment(self, text):
        self.items.append(('r', '    ; ' + text))

    def render(self):
        out = []
        hist = []
        def need(ins):
            n = 0
            srcs = set(ins.src); dsts = set(ins.dst)
            for p, age in hist:
                pd = set(p.dst)
                req = 0
                if p.kind == 'mfma':
                    x = {4: (8, 6, 3), 8: (12, 10, 7)}[p.passes]
                    if ins.kind == 'mfma':
                        if pd & set(ins.srcAB): req = max(req, x[0])
                        if pd & set(ins.srcC):
                            if not (ins.srcC == p.dst and ins.passes == p.passes): req = max(req, x[1])
                        elif pd & dsts: req = max(req, x[0])
                    elif ins.kind in ('valu', 'ds', 'vmem'):
                        if pd & (srcs | dsts): req = max(req, x[0])
                        if ins.kind == 'valu' and set(p.srcC) & dsts: req = max(req, x[2])
                elif p.kind == 'valu':
                    pv = {r for r in pd if r[0] in 'va'}
                    psg = {r for r in pd if r[0] == 's' or r == ('x', 'vcc')}
                    pex = ('x', 'exec') in pd
                    if ins.kind == 'mfma':
                        if pv & srcs: req = max(req, 2)
                        if pex: req = max(req, 4)
                    if ins.kind == 'valu':
                        if ins.dpp and pv & srcs: req = max(req, 2)
                        if ins.dpp and pex: req = max(req, 5)
                        if ins.op.startswith('v_permlane'):
                            if pv & srcs: req = max(req, 2)
                            if pex: req = max(req, 4)
                        if ins.op.startswith(('v_readlane', 'v_readfirstlane')):
                            if pv & srcs: req = max(req, 1)
                        if ins.op.startswith(('v_readlane', 'v_readfirstlane', 'v_writelane')):
                            if pex: req = max(req, 4)
                            if psg & srcs: req = max(req, 4)
                        if psg & srcs: req = max(req, 2)
                        if ins.op.startswith('v_div_fmas') and ('x', 'vcc') in pd: req = max(req, 4)
                        if p.op.startswith(TRANS) and pv & srcs and not ins.op.startswith(TRANS): req = max(req, 1)
                        if ('sdwa' in p.op or ('op_sel' in p.text and not p.op.startswith('v_pk_'))) and pv & (srcs | dsts): req = max(req, 1)
                        if pex and ('x', 'exec') in srcs: req = max(req, 2)
                    if ins.kind in ('vmem',) and psg & srcs: req = max(req, 5)
                    if ins.kind in ('vmem', 'ds') and p.op.startswith(TRANS) and pv & srcs: req = max(req, 1)
                    if ins.kind == 'salu' and psg & srcs: req = max(req, 1)
                elif p.kind == 'salu':
                    if ('x', 'm0') in pd and ins.lds: req = max(req, 1)
                elif p.kind == 'vmem' and p.wide_store:
                    if ins.kind == 'valu' and set(p.src) & dsts: req = max(req, 2)
                    elif set(r for r in p.src if r[0] in 'va') & dsts: req = max(req, 1)
                n = max(n, req - age)
            return n
        def advance(ws):
            nonlocal hist
            hist = [(p, a + ws) for p, a in hist if a + ws < 16]
        for kind, it in self.items:
            if kind == 'r': out.append(it); continue
            if kind == 'l': out.append(it + ':'); continue
            ins = it
            n = need(ins)
            if ins.op.startswith(('s_cbranch', 's_branch', 's_setpc')):
                for p, age in hist:
                    if p.kind == 'mfma': n = max(n, (12 if p.passes == 8 else 8) - age - 1)
                    elif p.kind == 'valu': n = max(n, (5 if any(r[0] in 'sx' for r in p.dst) else 2) - age - 1)
                    elif p.kind == 'vmem' and p.wide_store: n = max(n, 2 - age - 1)
                if getattr(ins, 'text', '').endswith(';nopad'): n = need(ins)
            while n > 0:
                k = min(n, 16)
                out.append(f'    s_nop {k-1}')
                advance(k); n -= k
            out.append('    ' + ins.text)
            advance(ins.ws)
            hist.append((ins, 0))
        return '\n'.join(out) + '\n'
```

```python
import sys, importlib
from common import *
import k2
def header(launches):
    ref = open(f'cdna_kernels/{NAME}.s.ref').read().split('\n')
    hdr = [l for l in ref if l.startswith(';') and '@launch' not in l and 'Override launch' not in l and 'grid=ceil' not in l]
    out = '\n'.join(hdr) + '\n'
    for k, g, b, lds in launches:
        out += f'; @launch kernel={k} grid=({g},1,1) block=({b},1,1) lds={lds}\n'
    out += '.amdgcn_target "amdgcn-amd-amdhsa--gfx950"\n.text\n'
    return out
def build(kernels, path):
    txt = header([(k[0], k[2], k[3], k[4]) for k in kernels])
    seen = []
    for label, gen, grid, block, lds, vg in kernels:
        if label in seen: continue
        seen.append(label)
        a = Asm(); gen(a)
        txt += f'.globl {label}\n.p2align 8\n.type {label},@function\n{label}:\n' + a.render()
    seen = []
    for label, gen, grid, block, lds, vg in kernels:
        if label in seen: continue
        seen.append(label)
        txt += kernel_desc(label, vg)
    open(path, 'w').write(txt)
if __name__ == '__main__':
    build([('k2_kernel', k2.gen_k2, k2.K2_NWG, 512, k2.K2_LDS, 256)], 'k2only.s')
```

```python
from asmlib import *
NAME = 'gated_mix__linear_attn_block__ssm_conv_s4d__prompt'
KA = dict(x=0, wqkv=8, wo=16, u=24, lar=32, aim=40, cr=48, ci=56, ldt=64, dsk=72, gw=80, out=88, dbg=96, ws=104)
WS_O = 0x000000
WS_B = 0x240000
WS_G = 0x480000
WS_P = 0x490000
WS_T = 0x600000
WS_SIZE = 0x700000
XB = 2048 * 576 * 2

def srd(a, d, base, nbytes, add=0):
    if add:
        a(f's_add_u32 {s(d)}, {s(base)}, {add:#x}')
        a(f's_addc_u32 {s(d+1)}, {s(base+1)}, 0')
        a(f's_and_b32 {s(d+1)}, {s(d+1)}, 0xffff')
    else:
        a(f's_mov_b32 {s(d)}, {s(base)}')
        a(f's_and_b32 {s(d+1)}, {s(base+1)}, 0xffff')
    a(f's_mov_b32 {s(d+2)}, {nbytes:#x}')
    a(f's_mov_b32 {s(d+3)}, 0x20000')

def kernel_desc(name, vgpr=256, sgpr=102):
    return f'''.section .rodata,"a"
.p2align 6
.amdhsa_kernel {name}
  .amdhsa_next_free_vgpr {vgpr}
  .amdhsa_next_free_sgpr {sgpr}
  .amdhsa_accum_offset {(vgpr + 3) // 4 * 4}
  .amdhsa_group_segment_fixed_size 0
  .amdhsa_kernarg_size 112
  .amdhsa_user_sgpr_count 2
  .amdhsa_user_sgpr_kernarg_segment_ptr 1
  .amdhsa_system_sgpr_workgroup_id_x 1
.end_amdhsa_kernel
'''
```

```python
from common import *
import math, struct
def f32(x): return '0x%08x' % struct.unpack('<I', struct.pack('<f', x))[0]
LOG2E = f32(math.log2(math.e))

G_NWG = 128
SLOT = 40960
G_LDS = 4 * SLOT
OFF_K, OFF_V = 16384, 28672
RED = 0
FRG = 24576
DUM = 32768
TOFF = (0, 40, 72, 112)

def gen_g(a, gid='s2', stamp=None):
    L = 'g'
    st = stamp if stamp else (lambda k: None)
    sX, sGW, sDBG = 4, 8, 12
    rX, rW, rWS, rGW, rDBG = 16, 20, 24, 28, 32
    sW, sRB, sHG, sKS, sSL, sT0, sT1, sT2, sI = 36, 37, 38, 39, 40, 41, 42, 43, 44
    sXB, sWB, sLX, sLW = 45, 46, 47, 48
    sL2 = 50
    sM1, sM2, sM3, sMG, sMO = 52, 54, 56, 58, 60
    a(f's_load_dwordx4 {s(sX,4)}, s[0:1], {KA["x"]}')
    a(f's_load_dwordx4 {s(sGW,4)}, s[0:1], {KA["gw"]}')
    a(f's_load_dwordx4 {s(sDBG,4)}, s[0:1], {KA["dbg"]}')
    vL = 1
    a('v_lshrrev_b32 v2, 6, v0')
    a(f'v_and_b32 {v(vL)}, 63, v0')
    a(f'v_readfirstlane_b32 {s(sW)}, v2')
    a(f's_and_b32 {s(sT0)}, {gid}, 7')
    a(f's_lshr_b32 {s(sT1)}, {gid}, 3')
    a(f's_lshl_b32 {s(sRB)}, {s(sT0)}, 1')
    a(f's_and_b32 {s(sT0)}, {s(sT1)}, 1')
    a(f's_add_u32 {s(sRB)}, {s(sRB)}, {s(sT0)}')
    a(f's_lshr_b32 {s(sHG)}, {s(sT1)}, 1')
    a(f's_lshl_b32 {s(sT0)}, {s(sT0)}, 2')
    a(f's_add_u32 {s(sKS)}, {s(sHG)}, {s(sT0)}')
    a(f's_sub_u32 {s(sT0)}, {s(sKS)}, 9')
    a(f's_cselect_b32 {s(sKS)}, {s(sKS)}, {s(sT0)}')
    a('s_waitcnt lgkmcnt(0)')
    srd(a, rX, sX, XB); srd(a, rW, sX + 2, 576 * 1728 * 2); srd(a, rWS, sDBG + 2, WS_SIZE)
    a(f's_cmp_ge_u32 {s(sW)}, 4')
    a(f's_cbranch_scc1 {L}_loader')

    st(0)
    vXA, vWA, vSH, vSQ = 2, 4, 8, 9
    vT = 10
    X0, ACC, RING = 16, 160, 232
    NS = 6
    a(f'v_and_b32 v10, 15, {v(vL)}')
    a(f'v_lshrrev_b32 v11, 4, {v(vL)}')
    a('v_lshrrev_b32 v12, 1, v10')
    a('v_xor_b32 v12, v12, v11')
    a('v_lshlrev_b32 v13, 7, v10')
    a(f's_lshl_b32 {s(sT0)}, {s(sW)}, 12')
    a(f'v_add_u32 v13, {s(sT0)}, v13')
    a(f'v_lshl_add_u32 {v(vXA)}, v12, 4, v13')
    a(f'v_xor_b32 {v(vXA+1)}, 64, {v(vXA)}')
    a(f'v_bfe_u32 v12, {v(vL)}, 2, 2')
    a('v_lshl_add_u32 v12, v11, 3, v12')
    a('v_mul_u32_u24 v12, 192, v12')
    a(f'v_and_b32 v13, 3, {v(vL)}')
    a('v_and_b32 v14, 1, v11')
    a('v_lshlrev_b32 v14, 5, v14')
    a(f's_and_b32 {s(sT0)}, {s(sHG)}, 3')
    a(f's_lshl_b32 {s(sT0)}, {s(sT0)}, 4')
    a(f'v_lshl_add_u32 v15, v13, 3, {s(sT0)}')
    for h in range(4):
        a(f'v_add_u32 v10, {TOFF[h]}, v15')
        a('v_xor_b32 v10, v10, v14')
        a(f'v_add_u32 {v(vWA+h)}, v10, v12')
    a('v_and_b32 v10, 1, v13')
    a('v_mul_u32_u24 v10, 72, v10')
    a(f'v_add3_u32 v10, v10, {s(sT0)}, 32')
    a('v_xor_b32 v10, v10, v14')
    a('v_add_u32 v10, v10, v12')
    a('v_lshrrev_b32 v13, 1, v13')
    a(f'v_mul_u32_u24 {v(vSQ)}, {OFF_V - OFF_K}, v13')
    a(f'v_add_u32 {v(vSH)}, v10, {v(vSQ)}')
    a(f's_mov_b32 {s(sL2)}, {LOG2E}')
    a(f's_mov_b32 {s(sL2+1)}, {LOG2E}')
    def mask(sreg, pred):
        m = sum(1 << l for l in range(64) if pred(l))
        a(f's_mov_b32 {s(sreg)}, {m & 0xffffffff:#x}')
        a(f's_mov_b32 {s(sreg+1)}, {m >> 32:#x}')
    owner = lambda c: c if c < 4 else ((c - 8) >> 1 if c >= 8 else 0)
    mask(sM1, lambda l: owner(l & 15) == 1); mask(sM2, lambda l: owner(l & 15) == 2); mask(sM3, lambda l: owner(l & 15) == 3)
    mask(sMG, lambda l: (l >> 4) == 1); mask(sMO, lambda l: (l & 15) < 8)
    addr_regs = [vXA, vXA + 1, vWA, vWA + 1, vWA + 2, vWA + 3, vSH]

    class Pipe:
        def __init__(self): self.fifo = []
        def issue(self, text, tag): a(text); self.fifo.append(tag)
        def wait(self, tags):
            idx = max([i for i, t in enumerate(self.fifo) if t in tags], default=-1)
            if idx < 0: return
            n = len(self.fifo) - idx - 1
            assert n <= 15
            a(f's_waitcnt lgkmcnt({n})'); self.fifo = self.fifo[idx + 1:]
        def drain(self):
            a('s_waitcnt lgkmcnt(0)'); self.fifo = []
    P = Pipe()
    cur_slot = [0]
    def move_slot(new, regs):
        d = (new - cur_slot[0]) * SLOT
        cur_slot[0] = new
        if d == 0: return
        for r in regs:
            if d > 0: a(f'v_add_u32 {v(r)}, {d}, {v(r)}')
            else: a(f'v_subrev_u32 {v(r)}, {-d}, {v(r)}')

    def run_phase(groups, load_fn, mfma_fn, stage_of, enter_stage, first_stage_entered=False, LA=NS-1, DELAY=2):
        N = len(groups); issued = 0; stage = stage_of(0) if first_stage_entered else None
        hold = 0
        def try_issue(upto, force):
            nonlocal issued, stage, hold
            while issued < min(upto, N):
                sg = stage_of(issued)
                if sg != stage:
                    if not force and hold < DELAY:
                        hold += 1; return
                    enter_stage(sg); stage = sg; hold = 0
                load_fn(issued); issued += 1
        try_issue(LA, True)
        for n in range(N):
            if issued <= n: try_issue(n + 1, True)
            mfma_fn(n)
            try_issue(n + 1 + LA, False)

    kvg = [(i, kk, T) for i in range(9) for kk in range(2) for T in range(9)]
    xreg = lambda i, kk, rt: X0 + ((2 * i + kk) * 2 + rt) * 4
    def kv_load(n):
        i, kk, T = kvg[n]
        if T == 0:
            for rt in range(2):
                P.issue(f'ds_read_b128 {v(xreg(i,kk,rt),4)}, {v(vXA+kk)} offset:{2048*rt}', ('x', i, kk))
        slot = RING + 4 * (n % NS)
        if T < 4: reg, so = vWA + T, OFF_K
        elif T == 4: reg, so = vSH, OFF_K
        else: reg, so = vWA + T - 5, OFF_V
        for rd in range(2):
            P.issue(f'ds_read_b64_tr_b16 {v(slot+2*rd,2)}, {v(reg)} offset:{so + (32*kk + 4*rd)*192}', ('w', n))
    def kv_mfma(n):
        i, kk, T = kvg[n]
        P.wait({('w', n), ('x', i, kk)})
        slot = RING + 4 * (n % NS)
        for rt in range(2):
            d = v(ACC + 8 * T + 4 * rt, 4)
            a(f'v_mfma_f32_16x16x32_bf16 {d}, {v(xreg(i,kk,rt),4)}, {v(slot,4)}, {d if (i or kk) else 0}')
    def kv_enter(sg):
        if sg: P.drain()
        a('s_barrier')
        move_slot(sg % 4, addr_regs)
        if sg == 0: st(1)
    run_phase(kvg, kv_load, kv_mfma, lambda n: kvg[n][0], kv_enter)
    a('s_barrier')
    st(2)
    base = lambda T: ACC + 8 * T
    def pack(dst, src):
        for p in range(4): a(f'v_cvt_pk_bf16_f32 {v(dst+p)}, {v(src+2*p)}, {v(src+2*p+1)}')
    def phi_pairs(pairs):
        for j in range(0, len(pairs), 2):
            grp = pairs[j:j+2]
            for k, (r, d) in enumerate(grp): a(f'v_cvt_pk_bf16_f32 {v(vT+4+k)}, {v(r)}, {v(r+1)}')
            for k, (r, d) in enumerate(grp):
                a(f'v_lshlrev_b32 {v(r)}, 16, {v(vT+4+k)}')
                a(f'v_and_b32 {v(r+1)}, 0xffff0000, {v(vT+4+k)}')
            for k, (r, d) in enumerate(grp): a(f'v_pk_mul_f32 {v(vT+2*k,2)}, {v(r,2)}, {s(sL2,2)}')
            for k, (r, d) in enumerate(grp):
                a(f'v_exp_f32 {v(vT+2*k)}, {v(vT+2*k)} clamp')
                a(f'v_max_f32 {v(r)}, {f32(1e-6)}, {v(r)}')
                a(f'v_exp_f32 {v(vT+2*k+1)}, {v(vT+2*k+1)} clamp')
                a(f'v_max_f32 {v(r+1)}, {f32(1e-6)}, {v(r+1)}')
            for k, (r, d) in enumerate(grp): a(f'v_pk_add_f32 {v(r,2)}, {v(r,2)}, {v(vT+2*k,2)}')
            for k, (r, d) in enumerate(grp): a(f'v_cvt_pk_bf16_f32 {v(d)}, {v(r)}, {v(r+1)}')
    BS = RING
    pack(BS, base(4))
    a(f'v_mov_b32 {v(vT)}, 0x3f803f80')
    for p in range(4): a(f'v_cndmask_b32 {v(BS+p)}, {v(BS+p)}, {v(vT)}, {s(sMO,2)}')
    for h in range(4): pack(base(5 + h), base(5 + h))
    MAIN = lambda h: base(5 + h) + 4
    COL = lambda h: RING + 4 + 4 * h
    ROW = lambda h: base(h) + 4
    SS = base(4) + 4
    for h in range(4):
        phi_pairs([(base(h) + 2 * p, base(h) + p) for p in range(4)])
        a(f'v_mfma_f32_16x16x32_bf16 {v(MAIN(h),4)}, {v(base(h),4)}, {v(base(5+h),4)}, 0')
        a(f'v_mfma_f32_16x16x32_bf16 {v(COL(h),4)}, {v(base(h),4)}, {v(BS,4)}, 0')
    phi_pairs([(base(4) + 2 * p, base(4) + p) for p in range(4)])
    for h in range(4):
        a(f'v_mfma_f32_16x16x32_bf16 {v(ROW(h),4)}, {v(base(4),4)}, {v(base(5+h),4)}, 0')
    a(f'v_mfma_f32_16x16x32_bf16 {v(SS,4)}, {v(base(4),4)}, {v(BS,4)}, 0')
    a(f's_mul_i32 {s(sT0)}, {s(sW)}, 6144')
    a(f'v_lshlrev_b32 {v(vT)}, 4, {v(vL)}')
    a(f'v_add_u32 {v(vT)}, {s(sT0)}, {v(vT)}')
    for h in range(4): a(f'ds_write_b128 {v(vT)}, {v(MAIN(h),4)} offset:{RED + 1024*h}')
    for h, m in ((1, sM1), (2, sM2), (3, sM3)):
        for r in range(4): a(f'v_cndmask_b32 {v(COL(0)+r)}, {v(COL(0)+r)}, {v(COL(h)+r)}, {s(m,2)}')
    a(f'ds_write_b128 {v(vT)}, {v(COL(0),4)} offset:{RED + 4096}')
    for r in range(2): a(f'v_cndmask_b32 {v(ROW(0)+r)}, {v(ROW(0)+r)}, {v(ROW(2)+r)}, {s(sMG,2)}')
    for r in range(2, 4): a(f'v_cndmask_b32 {v(ROW(0)+r)}, {v(ROW(1)+r)}, {v(ROW(3)+r)}, {s(sMG,2)}')
    for r in range(4): a(f'v_permlane32_swap_b32 {v(ROW(0)+r)}, {v(SS+r)}')
    a(f'ds_write_b128 {v(vT)}, {v(ROW(0),4)} offset:{RED + 5120}')
    a('s_waitcnt lgkmcnt(0)')
    a('s_barrier')
    st(3)
    a(f'v_sub_u32 {v(vSH)}, {v(vSH)}, {v(vSQ)}')
    qregs = [vWA, vWA + 1, vWA + 2, vWA + 3, vSH]
    qg = [(i, kk, T) for i in range(9) for kk in range(2) for T in range(5)]
    QA = lambda T, rt: ACC + (2 * T + rt) * 4
    def q_load(n):
        i, kk, T = qg[n]
        slot = RING + 4 * (n % NS)
        for rd in range(2):
            P.issue(f'ds_read_b64_tr_b16 {v(slot+2*rd,2)}, {v(qregs[T])} offset:{(i%3)*12288 + (32*kk + 4*rd)*192}', ('w', n))
    def q_mfma(n):
        i, kk, T = qg[n]
        P.wait({('w', n)})
        slot = RING + 4 * (n % NS)
        for rt in range(2):
            d = v(QA(T, rt), 4)
            a(f'v_mfma_f32_16x16x32_bf16 {d}, {v(slot,4)}, {v(xreg(i,kk,rt),4)}, {d if (i or kk) else 0}')
    run_phase(qg, q_load, q_mfma, lambda n: qg[n][0] // 3, lambda sg: move_slot(1 + sg, qregs), DELAY=0)
    st(4)
    for T in (4, 0, 1, 2, 3):
        phi_pairs([(QA(T, rt) + 2 * p, QA(T, rt) + p) for rt in range(2) for p in range(2)])
        if T < 4:
            for rt in range(2): a(f'v_mov_b64 {v(QA(T,rt)+2,2)}, {v(QA(4,rt),2)}')
    a(f's_lshl_b32 {s(sT0)}, {s(sRB)}, 3')
    a(f's_lshl_b32 {s(sT1)}, {s(sW)}, 1')
    a(f's_add_u32 {s(sT0)}, {s(sT0)}, {s(sT1)}')
    a(f's_mul_i32 {s(sT0)}, {s(sT0)}, {18*1024}')
    a(f's_lshl_b32 {s(sT1)}, {s(sHG)}, 11')
    a(f's_add_u32 {s(sT1)}, {s(sT1)}, {s(sT0)}')
    a(f's_lshr_b32 {s(sT2)}, {s(sHG)}, 2')
    a(f's_lshl_b32 {s(sT2)}, {s(sT2)}, 10')
    a(f's_add_u32 {s(sT0)}, {s(sT0)}, {s(sT2)}')
    a(f's_and_b32 {s(sT2)}, {s(sHG)}, 3')
    a(f's_lshl_b32 {s(sT2)}, {s(sT2)}, 2')
    a(f's_add_u32 {s(sT0)}, {s(sT0)}, {s(sT2)}')
    a(f's_add_u32 {s(sT0)}, {s(sT0)}, {16*1024}')
    a(f'v_lshlrev_b32 {v(vT)}, 4, {v(vL)}')
    a(f'v_add_u32 {v(vT+1)}, {18*1024}, {v(vT)}')
    st(5)
    a('s_barrier')
    st(6)
    FR = 16; NUMO = 48; REMO = 80; RC = 88; OUT = 104
    for f in (4, 5, 6, 7, 0, 1, 2, 3):
        a(f'ds_read_b128 {v(FR+4*f,4)}, {v(vT)} offset:{FRG + 1024*f}')
    for h in range(4):
        a(f's_waitcnt lgkmcnt({7-h})')
        for rt in range(2):
            d = v(REMO + 4 * rt, 4)
            a(f'v_mfma_f32_16x16x32_bf16 {d}, {v(FR+16+4*h,4)}, {v(QA(h,rt),4)}, {d if h else 0}')
    for h in range(4):
        a(f's_waitcnt lgkmcnt({3-h})')
        for rt in range(2):
            a(f'v_mfma_f32_16x16x32_bf16 {v(NUMO+(2*h+rt)*4,4)}, {v(FR+4*h,4)}, {v(QA(h,rt),4)}, 0')
    for rt in range(2):
        r = RC + 8 * rt; dn = REMO + 4 * rt + 2
        a(f'v_cvt_pk_bf16_f32 {v(r)}, {v(dn)}, {v(dn)}')
        a(f'v_lshlrev_b32 {v(r)}, 16, {v(r)}')
        a(f'v_add_f32 {v(r)}, {f32(1e-6)}, {v(r)}')
        a(f'v_cvt_pk_bf16_f32 {v(r)}, {v(r)}, {v(r)}')
        a(f'v_lshlrev_b32 {v(r)}, 16, {v(r)}')
        a(f'v_rcp_f32 {v(r+4)}, {v(r)}')
    for rt in range(2):
        r = RC + 8 * rt
        a(f'v_mov_b32 {v(r)}, {v(r+4)}')
        a(f'v_mov_b32 {v(r+1)}, {v(r+4)}')
    for rt in range(2):
        r = RC + 8 * rt
        a(f'v_permlane16_swap_b32 {v(r)}, {v(r+1)}')
    for rt in range(2):
        r = RC + 8 * rt
        a(f'v_mov_b32 {v(r+2)}, {v(r)}')
        a(f'v_mov_b32 {v(r+3)}, {v(r+1)}')
    for rt in range(2):
        r = RC + 8 * rt
        a(f'v_permlane32_swap_b32 {v(r)}, {v(r+2)}')
        a(f'v_permlane32_swap_b32 {v(r+1)}, {v(r+3)}')
    for rt in range(2):
        r = RC + 8 * rt; o = OUT + 12 * rt
        for h in range(4):
            n = NUMO + (2 * h + rt) * 4
            sel = f'op_sel:[0,{h&1}] op_sel_hi:[1,{h&1}]'
            a(f'v_pk_mul_f32 {v(n,2)}, {v(n,2)}, {v(r+(h&2),2)} {sel}')
            a(f'v_pk_mul_f32 {v(n+2,2)}, {v(n+2,2)}, {v(r+(h&2),2)} {sel}')
            a(f'v_cvt_pk_bf16_f32 {v(o+2*h)}, {v(n)}, {v(n+1)}')
            a(f'v_cvt_pk_bf16_f32 {v(o+2*h+1)}, {v(n+2)}, {v(n+3)}')
            if h & 1:
                a(f'buffer_store_dwordx4 {v(o+2*h-2,4)}, {v(vT+rt)}, {s(rWS,4)}, {s(sT1)} offen offset:{(h>>1)*1024}')
        n = REMO + 4 * rt
        a(f'v_pk_mul_f32 {v(n,2)}, {v(n,2)}, {v(r+4,2)} op_sel:[0,0] op_sel_hi:[1,0]')
        a(f'v_cvt_pk_bf16_f32 {v(o+8)}, {v(n)}, {v(n+1)}')
        a(f'buffer_store_dword {v(o+8)}, {v(vT+rt)}, {s(rWS,4)}, {s(sT0)} offen')
    st(7)
    a('s_endpgm')

    a.label(f'{L}_loader')
    a(f's_sub_u32 {s(sW)}, {s(sW)}, 4')
    VX, VW = 4, 8
    a(f'v_lshrrev_b32 v2, 3, {v(vL)}')
    a('v_mul_u32_u24 v2, 1152, v2')
    a(f'v_and_b32 v3, 7, {v(vL)}')
    a(f'v_lshrrev_b32 v12, 4, {v(vL)}')
    a('v_xor_b32 v3, v3, v12')
    a(f'v_lshl_add_u32 {v(VX)}, v3, 4, v2')
    a(f'v_xor_b32 {v(VX+1)}, 64, {v(VX)}')
    a(f'v_add_u32 {v(VX+2)}, {2*(9216-1024)}, {v(VX)}')
    a(f'v_add_u32 {v(VX+3)}, {3*(9216-1024)}, {v(VX+1)}')
    a(f'v_add_u32 {v(VX+1)}, {9216-1024}, {v(VX+1)}')
    a(f's_mov_b32 {s(sT0)}, 0x5556')
    for i in range(3):
        a(f'v_add_u32 v3, {64*i}, {v(vL)}')
        a('v_lshrrev_b32 v12, 2, v3')
        a(f'v_mul_u32_u24 v13, {s(sT0)}, v12')
        a('v_lshrrev_b32 v13, 16, v13')
        a('v_mul_u32_u24 v14, 12, v13')
        a('v_sub_u32 v14, v3, v14')
        a('v_lshrrev_b32 v15, 2, v13')
        a('v_and_b32 v15, 2, v15')
        a('v_xor_b32 v14, v14, v15')
        a('v_mul_u32_u24 v13, 3456, v13')
        a(f'v_lshl_add_u32 {v(VW+i)}, v14, 4, v13')
        if i: a(f'v_subrev_u32 {v(VW+i)}, {1024*i}, {v(VW+i)}')
    a(f's_lshl_b32 {s(sT0)}, {s(sRB)}, 2')
    a(f's_add_u32 {s(sT0)}, {s(sT0)}, {s(sW)}')
    a(f's_mul_i32 {s(sXB)}, {s(sT0)}, {32*1152}')
    a(f's_mul_i32 {s(sWB)}, {s(sHG)}, 144')
    a(f's_and_b32 {s(sWB)}, {s(sWB)}, 0xffc0')
    a(f's_mul_i32 {s(sT0)}, {s(sW)}, {16*3456}')
    a(f's_add_u32 {s(sWB)}, {s(sWB)}, {s(sT0)}')
    a(f's_lshl_b32 {s(sLX)}, {s(sW)}, 12')
    a(f's_mul_i32 {s(sLW)}, {s(sW)}, 3072')
    a(f's_mov_b32 {s(sSL)}, 0')
    def adv_ks():
        a(f's_add_u32 {s(sKS)}, {s(sKS)}, 1')
        a(f's_cmp_eq_u32 {s(sKS)}, 9')
        a(f's_cselect_b32 {s(sKS)}, 0, {s(sKS)}')
    def adv_slot():
        a(f's_add_u32 {s(sSL)}, {s(sSL)}, {SLOT}')
        a(f's_cmp_eq_u32 {s(sSL)}, {4*SLOT}')
        a(f's_cselect_b32 {s(sSL)}, 0, {s(sSL)}')
    a(f's_mov_b32 {s(sI)}, 0')
    a.label(f'{L}_lkv')
    a(f's_cmp_lt_u32 {s(sI)}, 3')
    a(f's_cbranch_scc1 {L}_lkv1')
    a('s_waitcnt vmcnt(20)')
    a('s_barrier')
    a.label(f'{L}_lkv1')
    a(f's_lshl_b32 {s(sT0)}, {s(sKS)}, 7')
    a(f's_add_u32 {s(sT0)}, {s(sT0)}, {s(sXB)}')
    a(f's_add_u32 m0, {s(sSL)}, {s(sLX)}')
    a(f's_mul_i32 {s(sT1)}, {s(sKS)}, {64*3456}')
    for i in range(4):
        a(f'buffer_load_dwordx4 {v(VX+i)}, {s(rX,4)}, {s(sT0)} offen offset:{1024*i} lds')
    a(f's_add_u32 {s(sT1)}, {s(sT1)}, {s(sWB)}')
    a(f's_add_u32 {s(sT2)}, {s(sSL)}, {s(sLW)}')
    for seg, off in ((1, OFF_K), (2, OFF_V)):
        a(f's_add_u32 m0, {s(sT2)}, {off}')
        a(f's_add_u32 {s(sT1)}, {s(sT1)}, 1152')
        for i in range(3):
            a(f'buffer_load_dwordx4 {v(VW+i)}, {s(rW,4)}, {s(sT1)} offen offset:{1024*i} lds')
    adv_ks(); adv_slot()
    a(f's_add_u32 {s(sI)}, {s(sI)}, 1')
    a(f's_cmp_lt_u32 {s(sI)}, 9')
    a(f's_cbranch_scc1 {L}_lkv')
    a(f's_mov_b32 {s(sI)}, 0')
    a.label(f'{L}_lq')
    a('s_waitcnt vmcnt(18)')
    a('s_barrier')
    a(f's_add_u32 {s(sT2)}, {s(sSL)}, {s(sLW)}')
    for b in range(3):
        a(f's_mul_i32 {s(sT1)}, {s(sKS)}, {64*3456}')
        a(f's_add_u32 m0, {s(sT2)}, {12288*b}')
        a(f's_add_u32 {s(sT1)}, {s(sT1)}, {s(sWB)}')
        for i in range(3):
            a(f'buffer_load_dwordx4 {v(VW+i)}, {s(rW,4)}, {s(sT1)} offen offset:{1024*i} lds')
        adv_ks()
    adv_slot()
    a(f's_add_u32 {s(sI)}, {s(sI)}, 1')
    a(f's_cmp_lt_u32 {s(sI)}, 3')
    a(f's_cbranch_scc1 {L}_lq')
    srd(a, rGW, sGW, 1152); srd(a, rDBG, sDBG, 256)
    a('s_waitcnt vmcnt(18)')
    a('s_barrier')
    for i in range(4): a(f'v_mov_b32 {v(16+i)}, 0')
    a(f'v_lshlrev_b32 v2, 4, {v(vL)}')
    a(f's_lshl_b32 {s(sT0)}, {s(sW)}, 11')
    a(f'v_add_u32 v3, {s(sT0)}, v2')
    a(f'ds_write_b128 v3, {v(16,4)} offset:{FRG}')
    a(f'ds_write_b128 v3, {v(16,4)} offset:{FRG + 1024}')
    GX, GWV = 32, 50
    a(f's_lshl_b32 {s(sT0)}, {s(sRB)}, 7')
    a(f's_lshl_b32 {s(sT1)}, {s(sHG)}, 4')
    a(f's_add_u32 {s(sT0)}, {s(sT0)}, {s(sT1)}')
    a(f's_lshl_b32 {s(sT1)}, {s(sW)}, 2')
    a(f's_add_u32 {s(sXB)}, {s(sT0)}, {s(sT1)}')
    a(f's_mul_i32 {s(sT0)}, {s(sXB)}, 1152')
    a(f'v_and_b32 v12, 31, {v(vL)}')
    a('v_lshlrev_b32 v12, 2, v12')
    a(f'v_lshrrev_b32 v13, 5, {v(vL)}')
    a('v_mul_u32_u24 v13, 1152, v13')
    a('v_add_u32 v13, v13, v12')
    for j in range(9):
        a(f'buffer_load_dword {v(GWV+j)}, v12, {s(rGW,4)}, 0 offen offset:{128*j}')
    for p in range(2):
        for j in range(9):
            a(f'buffer_load_dword {v(GX+9*p+j)}, v13, {s(rX,4)}, {s(sT0)} offen offset:{2304*p + 128*j}')
    a('s_waitcnt vmcnt(27) lgkmcnt(0)')
    a('s_barrier')
    a(f's_lshl_b32 {s(sT0)}, {s(sHG)}, 4')
    a(f's_add_u32 {s(sT0)}, {s(sT0)}, {s(sRB)}')
    a(f's_mul_i32 {s(sT0)}, {s(sT0)}, 6144')
    a(f's_lshl_b32 {s(sT1)}, {s(sW)}, 10')
    a(f's_add_u32 {s(sT0)}, {s(sT0)}, {s(sT1)}')
    a(f's_add_u32 {s(sT0)}, {s(sT0)}, {WS_P:#x}')
    a(f'v_add_u32 v3, {s(sT1)}, v2')
    S0 = 64
    def sumtile(off):
        for w in range(4): a(f'ds_read_b128 {v(S0+4*w,4)}, v3 offset:{RED + 6144*w + off}')
        a('s_waitcnt lgkmcnt(2)')
        for p in range(2): a(f'v_pk_add_f32 {v(S0+2*p,2)}, {v(S0+2*p,2)}, {v(S0+4+2*p,2)}')
        a('s_waitcnt lgkmcnt(0)')
        for p in range(2): a(f'v_pk_add_f32 {v(S0+8+2*p,2)}, {v(S0+8+2*p,2)}, {v(S0+12+2*p,2)}')
        for p in range(2): a(f'v_pk_add_f32 {v(S0+16+off//1024+2*p,2)}, {v(S0+2*p,2)}, {v(S0+8+2*p,2)}')
    sumtile(0)
    a(f'buffer_store_dwordx4 {v(S0+16,4)}, v2, {s(rWS,4)}, {s(sT0)} offen sc1')
    a(f's_cmp_ge_u32 {s(sW)}, 2')
    a(f's_cbranch_scc1 {L}_pub')
    sumtile(4096)
    a(f's_add_u32 {s(sT0)}, {s(sT0)}, 4096')
    a(f'buffer_store_dwordx4 {v(S0+20,4)}, v2, {s(rWS,4)}, {s(sT0)} offen sc1')
    a.label(f'{L}_pub')
    a(f's_lshl_b32 {s(sT2)}, {s(sHG)}, 5')
    a('v_mov_b32 v14, 0')
    a('v_mov_b32 v15, 1')
    a('s_waitcnt vmcnt(0)')
    a('s_mov_b64 exec, 1')
    a(f'buffer_atomic_add v15, v14, {s(rDBG,4)}, {s(sT2)} offen sc1')
    a('s_mov_b64 exec, -1')
    GA = 60
    for p in range(2):
        a(f'v_mov_b32 {v(GA+2*p)}, 0'); a(f'v_mov_b32 {v(GA+2*p+1)}, 0')
    for j in range(9):
        a(f'v_lshlrev_b32 v16, 16, {v(GWV+j)}')
        a(f'v_and_b32 v17, 0xffff0000, {v(GWV+j)}')
        for p in range(2):
            t = 18 + 4 * p; xr = GX + 9 * p + j
            a(f'v_lshlrev_b32 {v(t)}, 16, {v(xr)}')
            a(f'v_and_b32 {v(t+1)}, 0xffff0000, {v(xr)}')
            a(f'v_pk_mul_f32 {v(t,2)}, {v(t,2)}, v[16:17]')
            a(f'v_cvt_pk_bf16_f32 {v(t+2)}, {v(t)}, {v(t+1)}')
            a(f'v_lshlrev_b32 {v(t)}, 16, {v(t+2)}')
            a(f'v_and_b32 {v(t+1)}, 0xffff0000, {v(t+2)}')
            a(f'v_pk_add_f32 {v(GA+2*p,2)}, {v(GA+2*p,2)}, {v(t,2)}')
    for p in range(2): a(f'v_add_f32 {v(GA+2*p)}, {v(GA+2*p)}, {v(GA+2*p+1)}')
    for sh in (1, 2, 4, 8):
        for p in range(2): a(f'v_add_f32_dpp {v(GA+2*p)}, {v(GA+2*p)}, {v(GA+2*p)} row_ror:{sh} row_mask:0xf bank_mask:0xf')
    for p in range(2): a(f'v_mov_b32 {v(GA+2*p+1)}, {v(GA+2*p)}')
    for p in range(2): a(f'v_permlane16_swap_b32 {v(GA+2*p)}, {v(GA+2*p+1)}')
    for p in range(2): a(f'v_add_f32 {v(GA+2*p)}, {v(GA+2*p)}, {v(GA+2*p+1)}')
    a(f'v_and_b32 v16, 1, {v(vL)}')
    a('v_cmp_eq_u32 vcc, 1, v16')
    a(f'v_cndmask_b32 v17, {v(GA)}, {v(GA+2)}, vcc')
    a('v_cvt_pk_bf16_f32 v17, v17, v17')
    a('v_lshlrev_b32 v17, 16, v17')
    a(f'v_mul_f32 v17, {f32(-math.log2(math.e))}, v17')
    a('v_exp_f32 v17, v17')
    a('v_add_f32 v17, 1.0, v17')
    a('v_rcp_f32 v17, v17')
    a('v_cvt_pk_bf16_f32 v17, v17, v17')
    a('v_lshlrev_b32 v17, 16, v17')
    a(f'v_lshrrev_b32 v18, 5, {v(vL)}')
    a('v_lshl_add_u32 v18, v16, 1, v18')
    a('v_lshlrev_b32 v18, 2, v18')
    a(f's_lshl_b32 {s(sT0)}, {s(sXB)}, 2')
    a(f's_add_u32 {s(sT0)}, {s(sT0)}, {WS_G:#x}')
    a('s_mov_b32 exec_lo, 3')
    a('s_mov_b32 exec_hi, 3')
    a(f'buffer_store_dword v17, v18, {s(rWS,4)}, {s(sT0)} offen')
    a('s_mov_b64 exec, -1')
    vC, vGg, vD0, vD1 = 20, 21, 22, 23
    a(f'v_and_b32 {v(vC)}, 15, {v(vL)}')
    a(f'v_lshrrev_b32 {v(vGg)}, 4, {v(vL)}')
    a(f's_cmp_eq_u32 {s(sW)}, 1')
    a(f's_cbranch_scc1 {L}_sc1')
    a(f'v_subrev_u32 v16, 8, {v(vC)}')
    a('v_lshrrev_b32 v16, 1, v16')
    a(f'v_and_b32 v17, 1, {v(vC)}')
    a(f'v_cmp_gt_u32 vcc, 8, {v(vC)}')
    a(f'v_cndmask_b32 v16, v16, {v(vC)}, vcc')
    a('v_cndmask_b32 v17, v17, 2, vcc')
    a(f'v_mul_u32_u24 v16, {1024 + 64}, v16')
    a('v_lshl_add_u32 v16, v17, 4, v16')
    a(f'v_lshl_add_u32 v16, {v(vGg)}, 8, v16')
    a(f'v_add_u32 v16, {FRG + 4096}, v16')
    a(f'v_and_b32 v17, 12, {v(vC)}')
    a('v_cmp_eq_u32 vcc, 4, v17')
    a(f'v_mov_b32 v17, {DUM}')
    a(f'v_cndmask_b32 {v(vD0)}, v16, v17, vcc')
    a(f's_branch {L}_poll')
    a.label(f'{L}_sc1')
    a(f'v_and_b32 v16, 1, {v(vGg)}')
    a(f'v_subrev_u32 v24, 8, {v(vC)}')
    a('v_ashrrev_i32 v24, 1, v24')
    a(f'v_and_b32 v25, 1, {v(vC)}')
    a(f'v_mov_b32 v28, {DUM}')
    for pi in range(2):
        a(f'v_lshl_add_u32 v17, v16, 1, {pi}')
        a('v_lshlrev_b32 v18, 10, v17')
        a('v_lshl_add_u32 v18, v16, 8, v18')
        a(f'v_add_u32 v18, {FRG + 8 + 4*pi}, v18')
        a(f'v_lshl_add_u32 v19, {v(vC)}, 4, v18')
        a('v_lshl_add_u32 v26, v17, 6, v18')
        a('v_add_u32 v26, 4096, v26')
        a('v_lshl_add_u32 v27, v25, 4, v26')
        a('v_cmp_eq_u32 vcc, v24, v17')
        a('v_cndmask_b32 v27, v28, v27, vcc')
        a('v_add_u32 v26, 32, v26')
        a(f'v_cmp_eq_u32 vcc, 0, {v(vC)}')
        a('v_cndmask_b32 v27, v27, v26, vcc')
        a(f'v_cmp_gt_u32 vcc, 32, {v(vL)}')
        a(f'v_cndmask_b32 {v(vD0+pi)}, v27, v19, vcc')
    a.label(f'{L}_poll')
    a(f's_mov_b32 {s(sI)}, 0')
    a.label(f'{L}_poll1')
    a(f'buffer_load_dword v15, v14, {s(rDBG,4)}, {s(sT2)} offen sc1')
    a('s_waitcnt vmcnt(0)')
    a(f'v_readfirstlane_b32 {s(sT0)}, v15')
    a(f's_cmp_ge_u32 {s(sT0)}, 64')
    a(f's_cbranch_scc1 {L}_got')
    a('s_sleep 2')
    a(f's_add_u32 {s(sI)}, {s(sI)}, 1')
    a(f's_cmp_lt_u32 {s(sI)}, 0x40000')
    a(f's_cbranch_scc1 {L}_poll1')
    a.label(f'{L}_got')
    a(f's_mul_i32 {s(sT0)}, {s(sHG)}, {16*6144}')
    a(f's_add_u32 {s(sT0)}, {s(sT0)}, {s(sT1)}')
    a(f's_add_u32 {s(sT0)}, {s(sT0)}, {WS_P:#x}')
    PA, PB = 64, 128
    def loadp(dst):
        a(f's_mov_b32 {s(sI)}, {s(sT0)}')
        for r in range(16):
            a(f'buffer_load_dwordx4 {v(dst+4*r,4)}, v2, {s(rWS,4)}, {s(sI)} offen sc1')
            if r < 15: a(f's_add_u32 {s(sI)}, {s(sI)}, 6144')
    def sump(dst, extra):
        for r in range(1, 16):
            a(f's_waitcnt vmcnt({15 - r + extra})')
            for p in range(2): a(f'v_pk_add_f32 {v(dst+2*p,2)}, {v(dst+2*p,2)}, {v(dst+4*r+2*p,2)}')
        a(f'v_cvt_pk_bf16_f32 {v(dst)}, {v(dst)}, {v(dst+1)}')
        a(f'v_cvt_pk_bf16_f32 {v(dst+1)}, {v(dst+2)}, {v(dst+3)}')
    loadp(PA)
    a(f's_cmp_ge_u32 {s(sW)}, 2')
    a(f's_cbranch_scc1 {L}_one')
    a(f's_add_u32 {s(sT0)}, {s(sT0)}, 4096')
    loadp(PB)
    sump(PB, 0)
    a(f's_cmp_eq_u32 {s(sW)}, 1')
    a(f's_cbranch_scc1 {L}_w1')
    a(f'ds_write_b64 {v(vD0)}, {v(PB,2)}')
    a(f's_branch {L}_one')
    a.label(f'{L}_w1')
    a(f'ds_write_b32 {v(vD0)}, {v(PB)}')
    a(f'ds_write_b32 {v(vD1)}, {v(PB+1)}')
    a.label(f'{L}_one')
    sump(PA, 0)
    a(f'ds_write_b64 v3, {v(PA,2)} offset:{FRG}')
    a('s_waitcnt lgkmcnt(0)')
    a('s_barrier')
    a('s_endpgm')

def gen_g_only(a):
    a(f's_cmp_ge_u32 s2, {G_NWG}')
    a('s_cbranch_scc1 g_end')
    gen_g(a)
    a.label('g_end')
    a('s_endpgm')
```

```python
from common import *

K2_NWG = 192
K2_LDS_WO = 0
K2_LDS_B = 576 * 192
K2_LDS = K2_LDS_B + 96 * 128

def gen_k2(a, stamp=False):
    L = 'k2'
    sWO, sOUT, sWS = 4, 6, 8
    rWO, rOUT, rWS = 12, 16, 20
    sW, sRB, sNB, sT0, sT1, sSO = 24, 25, 26, 27, 28, 29
    a(f's_cmp_ge_u32 s2, {K2_NWG}')
    a(f's_cbranch_scc1 {L}_end')
    a(f's_load_dwordx2 {s(sWO,2)}, s[0:1], {KA["wo"]}')
    a(f's_load_dwordx2 {s(sOUT,2)}, s[0:1], {KA["out"]}')
    a(f's_load_dwordx2 {s(sWS,2)}, s[0:1], {KA["ws"]}')
    a('v_lshrrev_b32 v1, 6, v0')
    a('v_and_b32 v2, 63, v0')
    a(f'v_readfirstlane_b32 {s(sW)}, v1')
    a(f's_and_b32 {s(sT0)}, s2, 7')
    a(f's_lshr_b32 {s(sT1)}, s2, 3')
    a(f's_lshl_b32 {s(sRB)}, {s(sT0)}, 2')
    a(f's_and_b32 {s(sT0)}, {s(sT1)}, 3')
    a(f's_add_u32 {s(sRB)}, {s(sRB)}, {s(sT0)}')
    a(f's_lshr_b32 {s(sNB)}, {s(sT1)}, 2')
    a('s_waitcnt lgkmcnt(0)')
    srd(a, rWO, sWO, 576 * 576 * 2)
    srd(a, rOUT, sOUT, XB)
    srd(a, rWS, sWS, WS_SIZE)
    a(f's_cmp_ge_u32 {s(sW)}, 4')
    a(f's_cbranch_scc1 {L}_loader')

    vO, vACC, vA = 64, 136, 160
    NSLOT = 8
    vP, vQ, vPR, vQR, vG, vOMG, vST, vBA = 3, 4, 5, 6, 7, 8, 9, 10
    a(f's_lshl_b32 {s(sT0)}, {s(sRB)}, 2')
    a(f's_add_u32 {s(sT0)}, {s(sT0)}, {s(sW)}')
    a(f's_mul_i32 {s(sSO)}, {s(sT0)}, {18*1024}')
    a('v_lshlrev_b32 v11, 4, v2')
    for c in range(18):
        if c and c % 4 == 0:
            a(f's_add_u32 {s(sSO)}, {s(sSO)}, 4096')
        a(f'buffer_load_dwordx4 {v(vO+4*c,4)}, v11, {s(rWS,4)}, {s(sSO)} offen offset:{(c%4)*1024}')
    a('v_and_b32 v12, 15, v2')
    a('v_lshlrev_b32 v13, 2, v12')
    a(f's_lshl_b32 {s(sT1)}, {s(sT0)}, 6')
    a(f's_add_u32 {s(sT1)}, {s(sT1)}, {WS_G:#x}')
    a(f'buffer_load_dword {v(vG)}, v13, {s(rWS,4)}, {s(sT1)} offen')
    a('v_lshrrev_b32 v14, 4, v2')
    a('v_lshrrev_b32 v15, 2, v2')
    a('v_and_b32 v16, 3, v2')
    a('v_mul_u32_u24 v17, 192, v15')
    a('v_lshl_add_u32 v17, v16, 3, v17')
    a('v_and_b32 v18, 1, v14')
    a(f'v_lshl_add_u32 {v(vP)}, v18, 5, v17')
    a(f'v_xor_b32 v18, 1, v18')
    a(f'v_lshl_add_u32 {v(vQ)}, v18, 5, v17')
    a('v_bfe_u32 v18, v2, 3, 1')
    a('v_mul_u32_u24 v19, 72, v18')
    a('v_bfe_u32 v18, v2, 2, 1')
    a('v_add_u32 v19, v19, v18')
    a('v_bfe_u32 v18, v2, 4, 1')
    a('v_lshl_add_u32 v19, v18, 1, v19')
    a('v_lshrrev_b32 v18, 5, v2')
    a('v_mul_u32_u24 v20, 36, v18')
    a('v_add3_u32 v19, v19, v20, 16')
    a('v_mul_u32_u24 v19, 192, v19')
    a('v_lshl_add_u32 v19, v16, 3, v19')
    a(f'v_lshl_add_u32 {v(vPR)}, v18, 5, v19')
    a('v_xor_b32 v18, 1, v18')
    a(f'v_lshl_add_u32 {v(vQR)}, v18, 5, v19')
    a('v_lshlrev_b32 v19, 7, v15')
    a('v_lshl_add_u32 v19, v16, 3, v19')
    a(f's_lshl_b32 {s(sT1)}, {s(sW)}, 5')
    a(f's_add_u32 {s(sT1)}, {s(sT1)}, {K2_LDS_B}')
    a(f'v_add_u32 {v(vBA)}, {s(sT1)}, v19')
    a('v_mul_u32_u24 v19, 1152, v12')
    a('v_bfe_u32 v18, v2, 4, 1')
    a('v_lshl_add_u32 v19, v18, 5, v19')
    a('v_lshrrev_b32 v18, 5, v2')
    a(f'v_lshl_add_u32 {v(vST)}, v18, 4, v19')
    a(f's_mul_i32 {s(sSO)}, {s(sT0)}, {16*1152}')
    a(f's_mul_i32 {s(sT1)}, {s(sNB)}, 192')
    a(f's_add_u32 {s(sSO)}, {s(sSO)}, {s(sT1)}')
    for i in range(24):
        a(f'v_mov_b32 {v(vACC+i)}, 0')

    def groups_needed(c):
        return 9 if c >= 14 else -(-36 * (c + 1) // 64)
    HALF = 288 * 192
    shifted = {'m': False, 'r': False}
    def issue_reads(i):
        c, m = divmod(i, 6)
        slot = vA + 4 * (i % NSLOT)
        for rd in range(2):
            if c < 16:
                row = 36 * c + 20 * rd
                par = (row // 4) & 1
                reg = vP if ((m & 1) ^ par) == 0 else vQ
                off = row * 192 + (m >> 1) * 64
                if off >= HALF and not shifted['m']:
                    a(f'v_add_u32 {v(vP)}, {HALF}, {v(vP)}'); a(f'v_add_u32 {v(vQ)}, {HALF}, {v(vQ)}'); shifted['m'] = True
                if shifted['m']: off -= HALF
            else:
                row = 288 * (c - 16) + 144 * rd
                reg = vPR if (m & 1) == 0 else vQR
                off = row * 192 + (m >> 1) * 64
                if off >= HALF and not shifted['r']:
                    a(f'v_add_u32 {v(vPR)}, {HALF}, {v(vPR)}'); a(f'v_add_u32 {v(vQR)}, {HALF}, {v(vQR)}'); shifted['r'] = True
                if shifted['r']: off -= HALF
            assert 0 <= off < 65536
            a(f'ds_read_b64_tr_b16 {v(slot+2*rd,2)}, {v(reg)} offset:{off}')
    LA = 6
    nb = 0
    issued = 0
    N = 108
    def ensure_issue(upto):
        nonlocal issued, nb
        while issued < min(upto, N):
            need = groups_needed(issued // 6)
            while nb < need:
                a('s_barrier'); nb += 1
            issue_reads(issued); issued += 1
    ensure_issue(LA)
    for i in range(N):
        c, m = divmod(i, 6)
        outstanding = issued - i - 1
        w = f's_waitcnt lgkmcnt({2*outstanding})'
        if m == 0: w = f's_waitcnt vmcnt({18 - c}) lgkmcnt({2*outstanding})'
        a(w)
        slot = vA + 4 * (i % NSLOT)
        a(f'v_mfma_f32_16x16x32_bf16 {v(vACC+4*m,4)}, {v(slot,4)}, {v(vO+4*c,4)}, {v(vACC+4*m,4)}')
        ensure_issue(i + 1 + LA)
    assert nb == 9
    a('s_barrier')
    vB = 64
    for m in range(6):
        a(f'ds_read_b64_tr_b16 {v(vB+2*m,2)}, {v(vBA)} offset:{m*16*128}')
    a('s_waitcnt vmcnt(0)')
    a(f'v_sub_f32 {v(vOMG)}, 1.0, {v(vG)}')
    a(f'v_cvt_pk_bf16_f32 {v(vOMG)}, {v(vOMG)}, {v(vOMG)}')
    a(f'v_lshlrev_b32 {v(vOMG)}, 16, {v(vOMG)}')
    vT, vR = 80, 100
    for m in range(6):
        a(f's_waitcnt lgkmcnt({5-m})')
        t = vT + 4 * (m & 1)
        a(f'v_lshlrev_b32 {v(t)}, 16, {v(vB+2*m)}')
        a(f'v_and_b32 {v(t+1)}, 0xffff0000, {v(vB+2*m)}')
        a(f'v_lshlrev_b32 {v(t+2)}, 16, {v(vB+2*m+1)}')
        a(f'v_and_b32 {v(t+3)}, 0xffff0000, {v(vB+2*m+1)}')
        for r in range(4):
            a(f'v_mul_f32 {v(t+r)}, {v(vOMG)}, {v(t+r)}')
        for r in range(4):
            a(f'v_fmac_f32 {v(t+r)}, {v(vG)}, {v(vACC+4*m+r)}')
        o = vR + 4 * (m >> 1) + 2 * (m & 1)
        a(f'v_cvt_pk_bf16_f32 {v(o)}, {v(t)}, {v(t+1)}')
        a(f'v_cvt_pk_bf16_f32 {v(o+1)}, {v(t+2)}, {v(t+3)}')
        if m & 1:
            o = vR + 4 * (m >> 1)
            a(f'v_permlane16_swap_b32 {v(o)}, {v(o+2)}')
            a(f'v_permlane16_swap_b32 {v(o+1)}, {v(o+3)}')
            a(f'buffer_store_dwordx4 {v(o,4)}, {v(vST)}, {s(rOUT,4)}, {s(sSO)} offen offset:{(m>>1)*64}')
    a('s_endpgm')

    a.label(f'{L}_loader')
    a(f's_sub_u32 {s(sW)}, {s(sW)}, 4')
    a(f's_mov_b32 {s(sT0)}, 0x5556')
    for i in range(3):
        a(f'v_add_u32 v3, {64*i}, v2')
        a('v_lshrrev_b32 v4, 2, v3')
        a(f'v_mul_u32_u24 v5, {s(sT0)}, v4')
        a('v_lshrrev_b32 v5, 16, v5')
        a('v_mul_u32_u24 v6, 12, v5')
        a('v_sub_u32 v6, v3, v6')
        a('v_lshrrev_b32 v7, 1, v5')
        a('v_and_b32 v7, 2, v7')
        a('v_xor_b32 v6, v6, v7')
        a('v_mul_u32_u24 v5, 1152, v5')
        a(f'v_lshl_add_u32 {v(10+i)}, v6, 4, v5')
        if i: a(f'v_subrev_u32 {v(10+i)}, {1024*i}, {v(10+i)}')
    a(f's_mul_i32 {s(sSO)}, {s(sW)}, {16*1152}')
    a(f's_mul_i32 {s(sT1)}, {s(sNB)}, 192')
    a(f's_add_u32 {s(sSO)}, {s(sSO)}, {s(sT1)}')
    a(f's_mul_i32 {s(sT0)}, {s(sW)}, {16*192}')
    def issue_group():
        a(f's_mov_b32 m0, {s(sT0)}')
        for i in range(3):
            a(f'buffer_load_dwordx4 {v(10+i)}, {s(rWO,4)}, {s(sSO)} offen offset:{1024*i} lds')
        a(f's_add_u32 {s(sSO)}, {s(sSO)}, {64*1152}')
        a(f's_add_u32 {s(sT0)}, {s(sT0)}, {64*192}')
    PRE = 4
    for j in range(PRE): issue_group()
    a('v_lshrrev_b32 v3, 3, v2')
    a('v_and_b32 v4, 7, v2')
    a('v_lshlrev_b32 v3, 12, v3')
    a('v_lshl_add_u32 v13, v4, 4, v3')
    sB1, sB2 = 30, 31
    a(f's_mul_i32 {s(sB1)}, {s(sNB)}, {96*4096}')
    a(f's_mul_i32 {s(sB2)}, {s(sW)}, {24*4096}')
    a(f's_add_u32 {s(sB1)}, {s(sB1)}, {s(sB2)}')
    a(f's_lshl_b32 {s(sB2)}, {s(sRB)}, 7')
    a(f's_add_u32 {s(sB1)}, {s(sB1)}, {s(sB2)}')
    a(f's_add_u32 {s(sB1)}, {s(sB1)}, {WS_B:#x}')
    a(f's_mul_i32 {s(sB2)}, {s(sW)}, 3072')
    a(f's_add_u32 {s(sB2)}, {s(sB2)}, {K2_LDS_B}')
    issued = PRE
    for j in range(9):
        a(f's_waitcnt vmcnt({3*(issued - j - 1)})')
        a('s_barrier')
        if issued < 9:
            issue_group(); issued += 1
        elif issued == 9:
            for i in range(3):
                a(f's_mov_b32 m0, {s(sB2)}')
                a(f'buffer_load_dwordx4 v13, {s(rWS,4)}, {s(sB1)} offen lds')
                a(f's_add_u32 {s(sB1)}, {s(sB1)}, {8*4096}')
                a(f's_add_u32 {s(sB2)}, {s(sB2)}, 1024')
            issued += 1
    a('s_waitcnt vmcnt(0)')
    a('s_barrier')
    a.label(f'{L}_end')
    a('s_endpgm')
```

```python
from common import *
import math, struct

def f32(x): return '0x%08x' % struct.unpack('<I', struct.pack('<f', x))[0]

S_NWG = 144
U_COPY = 4512
U_CH = 4 * U_COPY
T_ENT = 288
T_WAVE = 25 * T_ENT
LDS_T = 0
LDS_U = 8 * T_WAVE
LDS_K = LDS_U + 4 * U_CH
K_CH = 4224
S_LDS = LDS_K + 4 * K_CH

def fold3(p): return (p ^ (p >> 3) ^ (p >> 6)) & 7
def bslot(p):
    row = 0 if p < 8 else (p.bit_length() - 3)
    return fold3(p) + 8 * row

def cmul(a, d, x, y, t):
    a(f'v_pk_mul_f32 {v(t,2)}, {v(x,2)}, {v(y,2)} op_sel:[0,0] op_sel_hi:[0,1]')
    a(f'v_pk_fma_f32 {v(d,2)}, {v(x,2)}, {v(y,2)}, {v(t,2)} op_sel:[1,1,0] op_sel_hi:[1,0,1] neg_lo:[0,1,0]')

def gen_ssm(a, sid='s2', stamp=None):
    L = 'ssm'
    st = stamp if stamp else (lambda k: None)
    sX, sP, sLD, sWS = 4, 8, 16, 20
    rX, rP0, rWS, rL = 24, 28, 44, 48
    sW, sC, sHF, sCH0, sCH, sT0, sT1, sIT = 56, 57, 58, 59, 60, 61, 62, 63
    sM = 64
    a(f's_load_dwordx2 {s(sX,2)}, s[0:1], {KA["x"]}')
    a(f's_load_dwordx8 {s(sP,8)}, s[0:1], {KA["lar"]}')
    a(f's_load_dwordx4 {s(sLD,4)}, s[0:1], {KA["ldt"]}')
    a(f's_load_dwordx2 {s(sWS,2)}, s[0:1], {KA["ws"]}')
    vL = 1
    a('v_lshrrev_b32 v2, 6, v0')
    a(f'v_and_b32 {v(vL)}, 63, v0')
    a(f'v_readfirstlane_b32 {s(sW)}, v2')
    a(f's_and_b32 {s(sT0)}, {sid}, 7')
    a(f's_mul_i32 {s(sT0)}, {s(sT0)}, 18')
    a(f's_lshr_b32 {s(sT1)}, {sid}, 3')
    a(f's_add_u32 {s(sCH0)}, {s(sT0)}, {s(sT1)}')
    a(f's_lshl_b32 {s(sCH0)}, {s(sCH0)}, 2')
    a(f's_and_b32 {s(sC)}, {s(sW)}, 3')
    a(f's_lshr_b32 {s(sHF)}, {s(sW)}, 2')
    a(f's_add_u32 {s(sCH)}, {s(sCH0)}, {s(sC)}')
    a('s_waitcnt lgkmcnt(0)')
    for i in range(4): srd(a, rP0 + 4 * i, sP + 2 * i, 576 * 128 * 2)
    srd(a, rL, sLD, 1152); srd(a, rL + 4, sLD + 2, 1152)
    st(0)
    vPRM, vLDT, vDSK = 4, 12, 13
    a(f'v_lshlrev_b32 v2, 1, {v(vL)}')
    a(f's_lshl_b32 {s(sT0)}, {s(sCH)}, 8')
    for it in range(2):
        for i in range(4):
            a(f'buffer_load_ushort {v(vPRM+4*it+i)}, v2, {s(rP0+4*i,4)}, {s(sT0)} offen offset:{128*it}')
    a(f's_lshl_b32 {s(sT1)}, {s(sCH)}, 1')
    a(f'v_mov_b32 v3, 0')
    a(f'buffer_load_ushort {v(vLDT)}, v3, {s(rL,4)}, {s(sT1)} offen')
    a(f'buffer_load_ushort {v(vDSK)}, v3, {s(rL+4,4)}, {s(sT1)} offen')
    srd(a, rX, sX, XB); srd(a, rWS, sWS, WS_SIZE)
    vU = 16
    a(f's_mov_b32 {s(sT0)}, {4*1152}')
    a(f'v_mul_lo_u32 v2, {s(sT0)}, v0')
    a(f's_lshl_b32 {s(sT1)}, {s(sCH0)}, 1')
    for r in range(4):
        a(f'buffer_load_dwordx2 {v(vU+2*r,2)}, v2, {s(rX,4)}, {s(sT1)} offen offset:{1152*r}')
    a(f'v_add_u32 v2, {4*1152}, v2')
    a(f's_mov_b32 {s(sM)}, 0x80008000')
    a(f's_mov_b32 {s(sM+1)}, 0x80008000')
    a(f's_mov_b64 exec, {s(sM,2)}')
    a(f'buffer_load_dwordx2 {v(vU+8,2)}, v2, {s(rX,4)}, {s(sT1)} offen')
    a('s_mov_b64 exec, -1')
    vZ = 28
    for i in range(4): a(f'v_mov_b32 {v(vZ+i)}, 0')
    a('v_lshrrev_b32 v2, 5, v0')
    a('v_and_b32 v3, 31, v0')
    a(f'v_mul_u32_u24 v2, {U_COPY}, v2')
    a('v_lshl_add_u32 v2, v3, 4, v2')
    a('v_cmp_gt_u32 vcc, 26, v3')
    a(f's_and_saveexec_b64 {s(sM,2)}, vcc')
    a(f'ds_write_b128 v2, {v(vZ,4)} offset:{LDS_U + 16 + 255*16}')
    a('s_mov_b64 exec, -1')
    a(f'v_lshrrev_b32 v2, 3, {v(vL)}')
    a('v_and_b32 v2, 3, v2')
    a(f'v_and_b32 v3, 7, {v(vL)}')
    a(f'v_mul_u32_u24 v2, {K_CH}, v2')
    a('v_lshl_add_u32 v2, v3, 4, v2')
    a(f'v_add_u32 v2, {LDS_K}, v2')
    a(f'ds_write_b128 v2, {v(vZ,4)}')
    vI, vGq = 32, 33
    vB1, vB2, vA1, vA2, vBP, vKE, vUA, vKA = 34, 35, 36, 37, 38, 39, 40, 41
    a(f'v_and_b32 {v(vI)}, 15, {v(vL)}')
    a(f'v_lshrrev_b32 {v(vGq)}, 4, {v(vL)}')
    a(f's_mul_i32 {s(sT0)}, {s(sW)}, {T_WAVE}')
    a(f's_add_u32 {s(sT0)}, {s(sT0)}, {LDS_T}')
    a(f's_mov_b32 m0, {s(sT0)}')
    a(f'v_lshlrev_b32 v2, 4, {v(vGq)}')
    a(f'v_add_u32 v2, {s(sT0)}, v2')
    a(f'v_lshrrev_b32 v3, 3, {v(vI)}')
    a(f'v_xor_b32 v3, v3, {v(vI)}')
    a(f'v_mad_u32_u24 {v(vB1)}, v3, {v(vZ)}, v2') if False else None
    a(f'v_mul_u32_u24 v3, {T_ENT}, v3')
    a(f'v_add_u32 {v(vB1)}, v2, v3')
    a(f'v_lshlrev_b32 v3, 1, {v(vI)}')
    a(f'v_lshrrev_b32 v26, 2, {v(vI)}')
    a('v_xor_b32 v3, v3, v26')
    a('v_and_b32 v3, 7, v3')
    a('v_min_u32 v26, 2, v26')
    a('v_lshl_add_u32 v3, v26, 3, v3')
    a(f'v_mul_u32_u24 v3, {T_ENT}, v3')
    a(f'v_add_u32 {v(vB2)}, v2, v3')
    a(f's_lshl_b32 {s(sT1)}, {s(sHF)}, 4')
    a(f'v_mov_b32 v26, {s(sT1)}')
    a(f'v_cmp_eq_u32 vcc, 0, {v(vI)}')
    a(f'v_cndmask_b32 v3, {v(vI)}, v26, vcc')
    a(f'v_mul_u32_u24 v3, {T_ENT}, v3')
    a(f'v_add_u32 {v(vA1)}, v2, v3')
    a(f'v_add_u32 v3, 8, {v(vI)}')
    a('v_max_u32 v3, 16, v3')
    a(f'v_cmp_gt_u32 vcc, 4, {v(vI)}')
    a('v_cndmask_b32 v3, v3, 24, vcc')
    a(f'v_mul_u32_u24 v3, {T_ENT}, v3')
    a(f'v_add_u32 {v(vA2)}, v2, v3')
    a(f'v_add_u32 v3, 16, {v(vL)}')
    a(f'v_add_u32 v26, 1, {v(vL)}')
    a('v_and_b32 v26, 15, v26')
    a(f'v_cmp_lt_u32 vcc, 47, {v(vL)}')
    a('v_cndmask_b32 v3, v3, v26, vcc')
    a(f'v_lshlrev_b32 {v(vBP)}, 2, v3')
    a(f'v_lshlrev_b32 v3, 5, {v(vI)}')
    a(f'v_lshl_add_u32 {v(vKE)}, {v(vGq)}, 3, v3')
    a(f'v_and_b32 v3, 3, {v(vI)}')
    a(f'v_mul_u32_u24 v3, {U_COPY}, v3')
    a(f'v_lshl_add_u32 v3, {v(vGq)}, 4, v3')
    a(f'v_lshrrev_b32 v26, 2, {v(vI)}')
    a('v_lshlrev_b32 v26, 7, v26')
    a('v_sub_u32 v3, v3, v26')
    a(f's_mul_i32 {s(sT0)}, {s(sC)}, {U_CH}')
    a(f's_lshl_b32 {s(sT1)}, {s(sHF)}, 8')
    a(f's_sub_u32 {s(sT0)}, {s(sT0)}, {s(sT1)}')
    a(f's_add_u32 {s(sT0)}, {s(sT0)}, {LDS_U + 16*277 - 64*63}')
    a(f'v_add_u32 {v(vUA)}, {s(sT0)}, v3')
    sKB = 66
    a(f's_mul_i32 {s(sKB)}, {s(sC)}, {K_CH}')
    a(f's_add_u32 {s(sKB)}, {s(sKB)}, {LDS_K + 128}')
    a(f's_sub_u32 {s(sT0)}, {s(sKB)}, {s(sT1)}')
    a(f's_add_u32 {s(sT0)}, {s(sT0)}, {328 - 192}')
    a(f'v_lshlrev_b32 v3, 3, {v(vI)}')
    a(f'v_lshl_add_u32 v3, {v(vGq)}, 4, v3')
    a(f'v_add_u32 {v(vKA)}, {s(sT0)}, v3')
    a('s_waitcnt lgkmcnt(0)')
    a('s_barrier')
    a('s_waitcnt vmcnt(5)')
    st(1)
    for i in range(10): a(f'v_lshlrev_b32 {v(vPRM+i)}, 16, {v(vPRM+i)}')
    LOG2E = f32(math.log2(math.e))
    vDT, vSC = 42, 43
    a(f'v_mul_f32 {v(vDT)}, {LOG2E}, {v(vLDT)}')
    a(f'v_exp_f32 {v(vDT)}, {v(vDT)}')
    a(f'v_cvt_pk_bf16_f32 {v(vDT)}, {v(vDT)}, {v(vDT)}')
    a(f'v_lshlrev_b32 {v(vDT)}, 16, {v(vDT)}')
    a(f'v_max_f32 v2, abs({v(vPRM+2)}), abs({v(vPRM+3)})')
    a(f'v_max3_f32 v2, abs({v(vPRM+6)}), abs({v(vPRM+7)}), v2')
    for sh in (1, 2, 4, 8):
        a(f'v_max_f32_dpp v2, v2, v2 row_ror:{sh} row_mask:0xf bank_mask:0xf')
    a('v_mov_b32 v3, v2')
    a('v_permlane16_swap_b32 v2, v3')
    a('v_max_f32 v2, v2, v3')
    a('v_mov_b32 v3, v2')
    a('v_permlane32_swap_b32 v2, v3')
    a('v_max_f32 v2, v2, v3')
    a('v_frexp_exp_i32_f32 v2, v2')
    a('v_sub_u32 v3, 0, v2')
    for r in (2, 3, 6, 7):
        a(f'v_ldexp_f32 {v(vPRM+r)}, {v(vPRM+r)}, v3')
    a('v_add_u32 v2, 1, v2')
    a(f'v_ldexp_f32 {v(vSC)}, {v(vDT)}, v2')
    a(f's_lshl_b32 {s(sT1)}, {s(sHF)}, 24')
    a(f's_add_u32 {s(sT0)}, {s(sT1)}, {LOG2E}')
    a(f's_add_u32 {s(sT1)}, {s(sT1)}, {f32(1/(2*math.pi))}')
    for it in range(2):
        r = vPRM + 4 * it
        a(f'v_mul_f32 {v(r)}, {LOG2E}, {v(r)}')
        a(f'v_exp_f32 {v(r)}, {v(r)}')
        a(f'v_cvt_pk_bf16_f32 {v(r)}, {v(r)}, {v(r)}')
        a(f'v_lshlrev_b32 {v(r)}, 16, {v(r)}')
        a(f'v_mul_f32 {v(r)}, {v(r)}, {v(vDT)}')
        a(f'v_mul_f32 {v(r)}, {s(sT0)}, -{v(r)}')
        a(f'v_mul_f32 {v(r+1)}, {v(r+1)}, {v(vDT)}')
        a(f'v_mul_f32 {v(r+1)}, {s(sT1)}, {v(r+1)}')
    vACC1, vACC2 = 44, 48
    for i in range(8): a(f'v_mov_b32 {v(vACC1+i)}, 0')
    a(f's_mov_b32 {s(sIT)}, 0')
    E1, E2, E8, E16, E32, E128, E256 = 52, 54, 56, 58, 60, 62, 64
    c1, c2, c3, t1, t2, t3 = 66, 68, 70, 72, 74, 76
    vH = 78
    vFB, vFA = 96, 128
    hrot = [0]
    def put(x, slot, neg=False):
        h = vH + hrot[0]; hrot[0] = (hrot[0] + 1) % 6
        a(f'v_cvt_pk_f16_f32 {v(h)}, {v(x)}, {"-" if neg else ""}{v(x+1)}')
        a(f'ds_write_addtid_b32 {v(h)} offset:{slot*T_ENT}')
    a.label(f'{L}_kloop')
    al, th, C = vPRM, vPRM + 1, vPRM + 2
    for E, p, t in ((E1, 1, t1), (E8, 8, t2), (E128, 128, t3)):
        if p == 1:
            a(f'v_exp_f32 {v(t)}, {v(al)}')
            a(f'v_fract_f32 {v(t+1)}, {v(th)}')
        else:
            a(f'v_mul_f32 {v(t)}, {f32(p)}, {v(al)}')
            a(f'v_mul_f32 {v(t+1)}, {f32(p)}, {v(th)}')
            a(f'v_exp_f32 {v(t)}, {v(t)}')
            a(f'v_fract_f32 {v(t+1)}, {v(t+1)}')
    for E, t in ((E1, t1), (E8, t2), (E128, t3)):
        a(f'v_cos_f32 {v(E)}, {v(t+1)}')
        a(f'v_sin_f32 {v(E+1)}, {v(t+1)}')
    for E, t in ((E1, t1), (E8, t2), (E128, t3)):
        a(f'v_pk_mul_f32 {v(E,2)}, {v(E,2)}, {v(t,2)} op_sel:[0,0] op_sel_hi:[1,0]')
    a(f'v_mov_b32 {v(vH+5)}, 0x3c00')
    a(f'ds_write_addtid_b32 {v(vH+5)} offset:{bslot(0)*T_ENT}')
    cmul(a, E2, E1, E1, t1)
    cmul(a, E16, E8, E8, t2)
    cmul(a, E256, E128, E128, t3)
    put(E1, bslot(1)); put(E8, bslot(8)); put(E2, bslot(2)); put(E16, bslot(16))
    cmul(a, E32, E16, E16, t2)
    for k in range(7):
        if k < 5: cmul(a, c1, E2 if k == 0 else c1, E1, t1)
        cmul(a, c2, E8 if k == 0 else c2, E1, t2)
        cmul(a, c3, E16 if k == 0 else c3, E2, t3)
        if k < 5: put(c1, bslot(3 + k))
        put(c2, bslot(9 + k)); put(c3, bslot(18 + 2 * k))
    for q in range(4):
        a(f'ds_read_b128 {v(vFB+4*q,4)}, {v(vB1)} offset:{64*q}')
        a(f'ds_read_b128 {v(vFB+16+4*q,4)}, {v(vB2)} offset:{64*q}')
    cmul(a, c2, C, E128, t2)
    cmul(a, c3, C, E256, t3)
    put(C, 0, True); put(c2, 8, True); put(c3, 16, True)
    for k in range(1, 9):
        if k < 8:
            cmul(a, c1, C if k == 1 else c1, E16, t1)
            cmul(a, c2, c2, E16, t2)
        cmul(a, c3, c3, E32, t3)
        if k < 8:
            put(c1, k, True); put(c2, 8 + k, True)
        put(c3, 16 + k, True)
    for q in range(4):
        a(f'ds_read_b128 {v(vFA+4*q,4)}, {v(vA1)} offset:{64*q}')
        a(f'ds_read_b128 {v(vFA+16+4*q,4)}, {v(vA2)} offset:{64*q}')
    for i in range(4): a(f'v_mov_b32 {v(vPRM+i)}, {v(vPRM+4+i)}')
    for q in range(4):
        a(f's_waitcnt lgkmcnt({6-2*q})')
        a(f'v_mfma_f32_16x16x32_f16 {v(vACC1,4)}, {v(vFB+4*q,4)}, {v(vFA+4*q,4)}, {v(vACC1,4)}')
        a(f'v_mfma_f32_16x16x32_f16 {v(vACC2,4)}, {v(vFB+16+4*q,4)}, {v(vFA+16+4*q,4)}, {v(vACC2,4)}')
    a(f's_add_u32 {s(sIT)}, {s(sIT)}, 1')
    a(f's_cmp_lt_u32 {s(sIT)}, 2')
    a(f's_cbranch_scc1 {L}_kloop ;nopad')
    st(2)
    a('s_waitcnt vmcnt(0)')
    st(3)
    a(f'v_mov_b32_dpp {v(vU+8)}, {v(vU)} row_shl:1 row_mask:0xf bank_mask:0xf')
    a(f'v_mov_b32_dpp {v(vU+9)}, {v(vU+1)} row_shl:1 row_mask:0xf bank_mask:0xf')
    a(f'v_lshlrev_b32 v2, 3, v0')
    a(f'v_sub_u32 v2, {LDS_U + 16 + 2*2040}, v2')
    a(f's_mov_b32 {s(sT0)}, 0x05040100')
    a(f's_mov_b32 {s(sT1)}, 0x07060302')
    vW = 96
    for c in range(4):
        sel = s(sT0) if c % 2 == 0 else s(sT1)
        R = lambda r: v(vU + 2 * r + (c >> 1))
        w = vW + 4 * c
        a(f'v_perm_b32 {v(w)}, {R(3)}, {R(4)}, {sel}')
        a(f'v_perm_b32 {v(w+1)}, {R(1)}, {R(2)}, {sel}')
        a(f'v_perm_b32 {v(w+2)}, {R(2)}, {R(3)}, {sel}')
        a(f'v_perm_b32 {v(w+3)}, {R(0)}, {R(1)}, {sel}')
    for c in range(4):
        w = vW + 4 * c
        if c: a(f'v_add_u32 v2, {U_CH}, v2')
        a(f'ds_write_b64 v2, {v(w,2)}')
        a(f'ds_write_b64 v2, {v(w+2,2)} offset:{3*U_COPY + 8}')
        a(f'v_add_u32 v3, {U_COPY}, v2')
        a(f'ds_write2_b32 v3, {v(w+2)}, {v(w+3)} offset0:1 offset1:2')
        a(f'v_add_u32 v3, {2*U_COPY}, v2')
        a(f'ds_write2_b32 v3, {v(w)}, {v(w+1)} offset0:1 offset1:2')
    a('v_cmp_eq_u32 vcc, 0, v0')
    a(f's_and_saveexec_b64 {s(sM,2)}, vcc')
    a(f's_cbranch_execz {L}_nou0')
    a('v_mov_b32 v2, 0')
    for c in range(4):
        op = 'ds_write_b16' if c % 2 == 0 else 'ds_write_b16_d16_hi'
        for sg in (0, 2):
            off = LDS_U + c * U_CH + sg * U_COPY + 16 + 2 * (2044 + sg)
            if off >= 65536:
                a(f'v_mov_b32 v3, {off}'); a(f'{op} v3, {v(vU+(c>>1))}')
            else:
                a(f'{op} v2, {v(vU+(c>>1))} offset:{off}')
    a.label(f'{L}_nou0')
    a('s_mov_b64 exec, -1')
    for i in range(8): a(f'v_mul_f32 {v(vACC1+i)}, {v(vSC)}, {v(vACC1+i)}')
    vN1, vN2 = 52, 53
    a(f'ds_bpermute_b32 {v(vN1)}, {v(vBP)}, {v(vACC1)}')
    a(f'ds_bpermute_b32 {v(vN2)}, {v(vBP)}, {v(vACC2)}')
    a(f's_mov_b32 {s(sM)}, 0xff00ff00')
    a(f's_mov_b32 {s(sM+1)}, 0xff00ff00')
    vE = 56
    def expand(acc, nb, pat, shift):
        val = lambda i: v(acc + i) if i < 4 else v(nb)
        a(f'v_lshlrev_b32 v2, {shift}, {v(vKE)}')
        a(f'v_add_u32 v2, {s(sKB)}, v2')
        for d, (i, j) in enumerate(pat):
            a(f'v_cvt_pk_bf16_f32 {v(vE+d)}, {val(i)}, {val(j)}')
            if d % 4 == 3:
                a(f'ds_write_b128 v2, {v(vE+d-3,4)} offset:{4*(d-3)}')
    a(f's_cmp_eq_u32 {s(sHF)}, 1')
    a(f's_cbranch_scc1 {L}_exp1')
    a(f'v_cmp_eq_u32 vcc, 0, {v(vL)}')
    a(f'v_cndmask_b32 v2, 0, {v(vDSK)}, vcc')
    a(f'v_add_f32 {v(vACC1)}, {v(vACC1)}, v2')
    a(f'v_add_u32 v2, {s(sKB)}, {v(vKE)}')
    a(f'v_cvt_pk_bf16_f32 {v(vE+16)}, {v(vACC1)}, {v(vACC1+1)}')
    a(f'v_cvt_pk_bf16_f32 {v(vE+17)}, {v(vACC1+2)}, {v(vACC1+3)}')
    a(f'ds_write_b64 v2, {v(vE+16,2)}')
    a(f's_mov_b64 exec, {s(sM,2)}')
    a('s_waitcnt lgkmcnt(1)')
    expand(vACC2, vN2, [(0,0),(1,2),(2,2),(3,4)], 1)
    a(f's_branch {L}_expdone')
    a.label(f'{L}_exp1')
    a(f's_mov_b64 exec, {s(sM,2)}')
    a('s_waitcnt lgkmcnt(0)')
    expand(vACC1, vN1, [(0,0),(0,1),(1,1),(2,2),(2,2),(2,3),(3,3),(4,4)], 2)
    vE = 64
    expand(vACC2, vN2, [(0,0),(0,0),(0,1),(1,1),(1,1),(1,1),(2,2),(2,2),(2,2),(2,2),(2,3),(3,3),(3,3),(3,3),(4,4),(4,4)], 3)
    a.label(f'{L}_expdone')
    a('s_mov_b64 exec, -1')
    vAC = 44
    a('s_waitcnt lgkmcnt(0)')
    a('s_barrier')
    st(4)
    vF = [96, 160]
    def loads(i):
        f = vF[i & 1]
        ins = []
        for c1_ in range(8):
            k = c1_
            ins.append(f'ds_read_b128 {v(f+4*c1_,4)}, {v(vUA)} offset:{64*(63 - 8*c1_ - i)}')
            ins.append(f'ds_read_b64 {v(f+32+4*k,2)}, {v(vKA)} offset:{512*k + 64*(3-i)}')
            ins.append(f'ds_read_b64 {v(f+32+4*k+2,2)}, {v(vKA)} offset:{512*k + 64*(3-i) + 8}')
        return ins
    for x in loads(0): a(x)
    first = set()
    for i in range(4):
        f = vF[i & 1]
        nxt = loads(i + 1) if i < 3 else []
        pairs = sorted([(c, k) for c in range(8) for k in range(8) if c + k <= 7], key=lambda p: (max(p), p))
        for idx, (c, k) in enumerate(pairs):
            if i == 0:
                if idx == 0: a('s_waitcnt lgkmcnt(12)')
                if idx == 16: a('s_waitcnt lgkmcnt(0)')
            elif idx == 0:
                a('s_waitcnt lgkmcnt(0)')
            n = c + k
            cin = v(vAC+4*n,4) if n in first else '0'
            first.add(n)
            a(f'v_mfma_f32_16x16x32_bf16 {v(vAC+4*n,4)}, {v(f+4*c,4)}, {v(f+32+4*k,4)}, {cin}')
            if nxt and i > 0: a(nxt.pop(0))
            if i == 0 and idx >= 16:
                for _ in range(2):
                    if nxt: a(nxt.pop(0))
        assert not nxt
    st(5)
    a(f's_xor_b32 {s(sT0)}, {s(sW)}, 4')
    a(f's_mul_i32 {s(sT0)}, {s(sT0)}, {T_WAVE}')
    a(f's_mul_i32 {s(sT1)}, {s(sW)}, {T_WAVE}')
    a(f'v_lshlrev_b32 v2, 4, {v(vL)}')
    a(f'v_add_u32 v2, {LDS_T}, v2')
    a(f'v_add_u32 v3, {s(sT1)}, v2')
    a(f'v_add_u32 v2, {s(sT0)}, v2')
    a(f's_cmp_eq_u32 {s(sHF)}, 1')
    a(f's_cbranch_scc1 {L}_red1')
    for n in range(4): a(f'ds_write_b128 v2, {v(vAC+16+4*n,4)} offset:{1024*n}')
    a(f's_branch {L}_red2')
    a.label(f'{L}_red1')
    for n in range(4): a(f'ds_write_b128 v2, {v(vAC+4*n,4)} offset:{1024*n}')
    for i in range(16): a(f'v_mov_b32 {v(vAC+i)}, {v(vAC+16+i)}')
    a.label(f'{L}_red2')
    a('s_waitcnt lgkmcnt(0)')
    a('s_barrier')
    for n in range(4): a(f'ds_read_b128 {v(96+4*n,4)}, v3 offset:{1024*n}')
    a(f's_lshl_b32 {s(sT0)}, {s(sCH)}, 12')
    a(f's_lshl_b32 {s(sT1)}, {s(sHF)}, 11')
    a(f's_add_u32 {s(sT0)}, {s(sT0)}, {s(sT1)}')
    a(f's_add_u32 {s(sT0)}, {s(sT0)}, {WS_B:#x}')
    a(f'v_lshlrev_b32 v2, 3, {v(vL)}')
    for n in range(4):
        a(f's_waitcnt lgkmcnt({3-n})')
        a(f'v_pk_add_f32 {v(96+4*n,2)}, {v(96+4*n,2)}, {v(vAC+4*n,2)}')
        a(f'v_pk_add_f32 {v(96+4*n+2,2)}, {v(96+4*n+2,2)}, {v(vAC+4*n+2,2)}')
        a(f'v_cvt_pk_bf16_f32 {v(112+2*n)}, {v(96+4*n)}, {v(96+4*n+1)}')
        a(f'v_cvt_pk_bf16_f32 {v(112+2*n+1)}, {v(96+4*n+2)}, {v(96+4*n+3)}')
        a(f'buffer_store_dwordx2 {v(112+2*n,2)}, v2, {s(rWS,4)}, {s(sT0)} offen offset:{512*n}')
    st(6)
    a('s_endpgm')

def gen_ssm_only(a):
    a(f's_cmp_ge_u32 s2, {S_NWG}')
    a('s_cbranch_scc1 ssm_end')
    gen_ssm(a)
    a.label('ssm_end')
    a('s_endpgm')
```

```python
import sys
from build import *
import gq, ssm, k2
def gen_k1(a):
    a(f's_cmp_ge_u32 s2, {gq.G_NWG + ssm.S_NWG}')
    a('s_cbranch_scc1 k1_end')
    a(f's_cmp_ge_u32 s2, {gq.G_NWG}')
    a('s_cbranch_scc1 k1_ssm')
    gq.gen_g(a)
    a.label('k1_ssm')
    a(f's_sub_u32 s3, s2, {gq.G_NWG}')
    ssm.gen_ssm(a, sid='s3')
    a.label('k1_end')
    a('s_endpgm')
out = sys.argv[1] if len(sys.argv) > 1 else f'cdna_kernels/{NAME}.s'
build([('k1_kernel', gen_k1, gq.G_NWG + ssm.S_NWG, 512, gq.G_LDS, 256),
       ('k2_kernel', k2.gen_k2, k2.K2_NWG, 512, k2.K2_LDS, 256)], out)
```

```python
from asmlib import *
NAME = 'gated_mix__linear_attn_block__ssm_conv_s4d__prompt'
KA = dict(x=0, wqkv=8, wo=16, u=24, lar=32, aim=40, cr=48, ci=56, ldt=64, dsk=72, gw=80, out=88, dbg=96, ws=104)
WS_O = 0x000000
WS_B = 0x240000
WS_G = 0x480000
WS_P = 0x490000
WS_T = 0x600000
WS_SIZE = 0x700000
XB = 2048 * 576 * 2

def srd(a, d, base, nbytes, add=0):
    if add:
        a(f's_add_u32 {s(d)}, {s(base)}, {add:#x}')
        a(f's_addc_u32 {s(d+1)}, {s(base+1)}, 0')
        a(f's_and_b32 {s(d+1)}, {s(d+1)}, 0xffff')
    else:
        a(f's_mov_b32 {s(d)}, {s(base)}')
        a(f's_and_b32 {s(d+1)}, {s(base+1)}, 0xffff')
    a(f's_mov_b32 {s(d+2)}, {nbytes:#x}')
    a(f's_mov_b32 {s(d+3)}, 0x20000')

def kernel_desc(name, vgpr=256, sgpr=102):
    return f'''.section .rodata,"a"
.p2align 6
.amdhsa_kernel {name}
  .amdhsa_next_free_vgpr {vgpr}
  .amdhsa_next_free_sgpr {sgpr}
  .amdhsa_accum_offset {(vgpr + 3) // 4 * 4}
  .amdhsa_group_segment_fixed_size 0
  .amdhsa_kernarg_size 112
  .amdhsa_user_sgpr_count 2
  .amdhsa_user_sgpr_kernarg_segment_ptr 1
  .amdhsa_system_sgpr_workgroup_id_x 1
.end_amdhsa_kernel
'''

class Stamper:
    def __init__(self, a, region=0, enabled=True):
        self.a = a; self.region = region; self.enabled = enabled
    def __call__(self, k):
        if not self.enabled: return
        a = self.a
        if k == 0:
            a('s_memrealtime s[100:101]')
        a(f's_memtime {s(70+2*k,2)}')
        a('s_waitcnt lgkmcnt(0)')
    def init(self):
        if not self.enabled: return
        for i in range(70, 102): self.a(f's_mov_b32 s{i}, 0')
    def flush(self):
        if not self.enabled: return
        a = self.a
        a('s_memrealtime s[98:99]')
        a(f's_load_dwordx2 s[66:67], s[0:1], {KA["ws"]}')
        a('s_waitcnt lgkmcnt(0)')
        a('s_mov_b32 s64, s66'); a('s_and_b32 s65, s67, 0xffff'); a(f's_mov_b32 s66, {WS_SIZE:#x}'); a('s_mov_b32 s67, 0x20000')
        a('s_mov_b64 exec, -1')
        a('v_lshrrev_b32 v250, 6, v0')
        a('v_lshlrev_b32 v250, 7, v250')
        a('s_lshl_b32 s68, s2, 10')
        a(f's_add_u32 s68, s68, {WS_T + self.region:#x}')
        a('s_mov_b64 exec, 1')
        for k in range(8):
            for i in range(4): a(f'v_mov_b32 v{252+i}, s{70+4*k+i}')
            a(f'buffer_store_dwordx4 v[252:255], v250, s[64:67], s68 offen offset:{16*k}')
        a('s_waitcnt vmcnt(0)')

def prefetch(a, wg, sW, vL, rX, rW, dst, tv, ts, lbl, gran=128):
    sX, sJ, sA, sB = ts, ts + 1, ts + 2, ts + 3
    two = gran == 64
    a(f's_and_b32 {s(sX)}, {wg}, 7')
    a(f's_lshr_b32 {s(sJ)}, {wg}, 3')
    a(f's_and_b32 {s(sJ)}, {s(sJ)}, 15')
    a(f's_cmp_gt_u32 {s(sW)}, 3')
    a(f's_cbranch_scc1 {lbl}_pfend')
    a(f's_bitcmp1_b32 {s(sW)}, 0')
    a(f's_cbranch_scc1 {lbl}_pfw')
    a(f's_cmp_eq_u32 {s(sW)}, 2')
    a(f's_cbranch_scc1 {lbl}_pfu')
    a(f'v_lshrrev_b32 {v(tv)}, 1, {v(vL)}')
    a(f'v_mul_u32_u24 {v(tv)}, 1152, {v(tv)}')
    a(f'v_and_b32 {v(tv+1)}, 1, {v(vL)}')
    a(f'v_lshl_add_u32 {v(tv)}, {v(tv+1)}, {6 if two else 7}, {v(tv)}')
    a(f's_lshr_b32 {s(sA)}, {s(sX)}, 1')
    a(f's_lshl4_add_u32 {s(sA)}, {s(sA)}, {s(sJ)}')
    a(f's_mul_i32 {s(sA)}, {s(sA)}, {32*1152}')
    if two:
        for k in range(9): a(f'buffer_load_dword {v(dst)}, {v(tv)}, {s(rX,4)}, {s(sA)} offen offset:{128*k}')
    else:
        for k in range(5): a(f'buffer_load_dword {v(dst)}, {v(tv)}, {s(rX,4)}, {s(sA)} offen offset:{min(256*k, 896)}')
    a(f's_branch {lbl}_pfend')
    a.label(f'{lbl}_pfu')
    a(f's_mul_i32 {s(sA)}, {s(sJ)}, {128*1152}')
    a(f's_mul_i32 {s(sB)}, {s(sX)}, 144')
    a(f's_and_b32 {s(sB)}, {s(sB)}, 0xffc0')
    a(f's_add_u32 {s(sA)}, {s(sA)}, {s(sB)}')
    a(f'v_mul_u32_u24 {v(tv)}, 1152, {v(vL)}')
    for h in range(2):
        for b in ((0, 64, 128) if two else (0, 128)):
            a(f'buffer_load_dword {v(dst)}, {v(tv)}, {s(rX,4)}, {s(sA)} offen offset:{b}')
        if h == 0: a(f's_add_u32 {s(sA)}, {s(sA)}, {64*1152}')
    a(f's_branch {lbl}_pfend')
    a.label(f'{lbl}_pfw')
    nb = 9 if two else 5
    a(f'v_mul_u32_u24 {v(tv+2)}, {57 if two else 103}, {v(vL)}')
    a(f'v_lshrrev_b32 {v(tv+2)}, 9, {v(tv+2)}')
    a(f'v_mul_u32_u24 {v(tv+3)}, {nb}, {v(tv+2)}')
    a(f'v_sub_u32 {v(tv+3)}, {v(vL)}, {v(tv+3)}')
    a(f'v_lshlrev_b32 {v(tv+3)}, {6 if two else 7}, {v(tv+3)}')
    a(f's_and_b32 {s(sX)}, {s(sX)}, 1')
    a(f's_mul_i32 {s(sX)}, {s(sX)}, 576')
    a(f's_cmp_eq_u32 {s(sW)}, 3')
    a(f's_cbranch_scc1 {lbl}_pfq')
    a(f'v_lshrrev_b32 {v(tv)}, 1, {v(tv+2)}')
    a(f'v_add_u32 {v(tv)}, {v(tv)}, {v(tv+2)}')
    a(f'v_mul_u32_u24 {v(tv)}, 1152, {v(tv)}')
    a(f'v_add_u32 {v(tv)}, {v(tv)}, {v(tv+3)}')
    a(f's_mul_i32 {s(sB)}, {s(sJ)}, {4*3456}')
    a(f's_add_u32 {s(sB)}, {s(sB)}, {s(sX)}')
    a('s_mov_b32 exec_hi, ' + ('15' if two else '0xff'))
    for k in range(9):
        a(f'buffer_load_dword {v(dst)}, {v(tv)}, {s(rW,4)}, {s(sB)} offen offset:1152')
        if two:
            a(f's_add_u32 {s(sA)}, {s(sB)}, {2*3456}')
            a(f'buffer_load_dword {v(dst)}, {v(tv)}, {s(rW,4)}, {s(sA)} offen offset:1152')
        if k < 8: a(f's_add_u32 {s(sB)}, {s(sB)}, {64*3456}')
    a(f's_branch {lbl}_pfend')
    a.label(f'{lbl}_pfq')
    rp = 6 if two else 12
    a(f'v_mul_u32_u24 {v(tv)}, 3456, {v(tv+2)}')
    a(f'v_add_u32 {v(tv)}, {v(tv)}, {v(tv+3)}')
    a(f's_mul_i32 {s(sB)}, {s(sJ)}, {36*3456}')
    a(f's_add_u32 {s(sB)}, {s(sB)}, {s(sX)}')
    a(f's_mov_b32 exec_hi, {(1 << (rp*nb - 32)) - 1:#x}')
    a('s_sleep 20')
    for k in range(36 // rp):
        a(f'buffer_load_dword {v(dst)}, {v(tv)}, {s(rW,4)}, {s(sB)} offen')
        a(f's_add_u32 {s(sB)}, {s(sB)}, {rp*3456}')
    a.label(f'{lbl}_pfend')
    a('s_mov_b64 exec, -1')
```

```python
from common import *

K2_NWG = 192
K2_LDS_WO = 0
K2_LDS_B = 576 * 192
K2_LDS = K2_LDS_B + 96 * 128

def gen_k2(a, stamp=None):
    L = 'k2'
    st = stamp if stamp else Stamper(a, enabled=False)
    sWO, sOUT, sWS = 4, 6, 8
    rWO, rOUT, rWS = 12, 16, 20
    sW, sRB, sNB, sT0, sT1, sSO = 24, 25, 26, 27, 28, 29
    a(f's_cmp_ge_u32 s2, {K2_NWG}')
    a(f's_cbranch_scc1 {L}_end')
    st.init()
    st(0)
    a(f's_load_dwordx2 {s(sWO,2)}, s[0:1], {KA["wo"]}')
    a(f's_load_dwordx2 {s(sOUT,2)}, s[0:1], {KA["out"]}')
    a(f's_load_dwordx2 {s(sWS,2)}, s[0:1], {KA["ws"]}')
    a('v_lshrrev_b32 v1, 6, v0')
    a('v_and_b32 v2, 63, v0')
    a(f'v_readfirstlane_b32 {s(sW)}, v1')
    a(f's_and_b32 {s(sT0)}, s2, 7')
    a(f's_lshr_b32 {s(sT1)}, s2, 3')
    a(f's_lshl_b32 {s(sRB)}, {s(sT0)}, 2')
    a(f's_and_b32 {s(sT0)}, {s(sT1)}, 3')
    a(f's_add_u32 {s(sRB)}, {s(sRB)}, {s(sT0)}')
    a(f's_lshr_b32 {s(sNB)}, {s(sT1)}, 2')
    a('s_waitcnt lgkmcnt(0)')
    srd(a, rWO, sWO, 576 * 576 * 2)
    srd(a, rOUT, sOUT, XB)
    srd(a, rWS, sWS, WS_SIZE)
    a(f's_cmp_ge_u32 {s(sW)}, 4')
    a(f's_cbranch_scc1 {L}_loader')

    vO, vACC, vA = 64, 136, 160
    NSLOT = 8
    vP, vQ, vPR, vQR, vG, vOMG, vST, vBA = 3, 4, 5, 6, 7, 8, 9, 10
    a(f's_lshl_b32 {s(sT0)}, {s(sRB)}, 2')
    a(f's_add_u32 {s(sT0)}, {s(sT0)}, {s(sW)}')
    a(f's_mul_i32 {s(sSO)}, {s(sT0)}, {18*1024}')
    a('v_lshlrev_b32 v11, 4, v2')
    for c in range(18):
        if c and c % 4 == 0:
            a(f's_add_u32 {s(sSO)}, {s(sSO)}, 4096')
        a(f'buffer_load_dwordx4 {v(vO+4*c,4)}, v11, {s(rWS,4)}, {s(sSO)} offen offset:{(c%4)*1024}')
    a('v_and_b32 v12, 15, v2')
    a('v_lshlrev_b32 v13, 2, v12')
    a(f's_lshl_b32 {s(sT1)}, {s(sT0)}, 6')
    a(f's_add_u32 {s(sT1)}, {s(sT1)}, {WS_G:#x}')
    a(f'buffer_load_dword {v(vG)}, v13, {s(rWS,4)}, {s(sT1)} offen')
    a('v_lshrrev_b32 v14, 4, v2')
    a('v_lshrrev_b32 v15, 2, v2')
    a('v_and_b32 v16, 3, v2')
    a('v_mul_u32_u24 v17, 192, v15')
    a('v_lshl_add_u32 v17, v16, 3, v17')
    a('v_and_b32 v18, 1, v14')
    a(f'v_lshl_add_u32 {v(vP)}, v18, 5, v17')
    a(f'v_xor_b32 v18, 1, v18')
    a(f'v_lshl_add_u32 {v(vQ)}, v18, 5, v17')
    a('v_bfe_u32 v18, v2, 3, 1')
    a('v_mul_u32_u24 v19, 72, v18')
    a('v_bfe_u32 v18, v2, 2, 1')
    a('v_add_u32 v19, v19, v18')
    a('v_bfe_u32 v18, v2, 4, 1')
    a('v_lshl_add_u32 v19, v18, 1, v19')
    a('v_lshrrev_b32 v18, 5, v2')
    a('v_mul_u32_u24 v20, 36, v18')
    a('v_add3_u32 v19, v19, v20, 16')
    a('v_mul_u32_u24 v19, 192, v19')
    a('v_lshl_add_u32 v19, v16, 3, v19')
    a(f'v_lshl_add_u32 {v(vPR)}, v18, 5, v19')
    a('v_xor_b32 v18, 1, v18')
    a(f'v_lshl_add_u32 {v(vQR)}, v18, 5, v19')
    a('v_lshlrev_b32 v19, 7, v15')
    a('v_lshl_add_u32 v19, v16, 3, v19')
    a(f's_lshl_b32 {s(sT1)}, {s(sW)}, 5')
    a(f's_add_u32 {s(sT1)}, {s(sT1)}, {K2_LDS_B}')
    a(f'v_add_u32 {v(vBA)}, {s(sT1)}, v19')
    a('v_mul_u32_u24 v19, 1152, v12')
    a('v_bfe_u32 v18, v2, 4, 1')
    a('v_lshl_add_u32 v19, v18, 5, v19')
    a('v_lshrrev_b32 v18, 5, v2')
    a(f'v_lshl_add_u32 {v(vST)}, v18, 4, v19')
    a(f's_mul_i32 {s(sSO)}, {s(sT0)}, {16*1152}')
    a(f's_mul_i32 {s(sT1)}, {s(sNB)}, 192')
    a(f's_add_u32 {s(sSO)}, {s(sSO)}, {s(sT1)}')
    for i in range(24):
        a(f'v_mov_b32 {v(vACC+i)}, 0')

    def groups_needed(c):
        return 9 if c >= 14 else -(-36 * (c + 1) // 64)
    HALF = 288 * 192
    shifted = {'m': False, 'r': False}
    def issue_reads(i):
        c, m = divmod(i, 6)
        slot = vA + 4 * (i % NSLOT)
        for rd in range(2):
            if c < 16:
                row = 36 * c + 20 * rd
                par = (row // 4) & 1
                reg = vP if ((m & 1) ^ par) == 0 else vQ
                off = row * 192 + (m >> 1) * 64
                if off >= HALF and not shifted['m']:
                    a(f'v_add_u32 {v(vP)}, {HALF}, {v(vP)}'); a(f'v_add_u32 {v(vQ)}, {HALF}, {v(vQ)}'); shifted['m'] = True
                if shifted['m']: off -= HALF
            else:
                row = 288 * (c - 16) + 144 * rd
                reg = vPR if (m & 1) == 0 else vQR
                off = row * 192 + (m >> 1) * 64
                if off >= HALF and not shifted['r']:
                    a(f'v_add_u32 {v(vPR)}, {HALF}, {v(vPR)}'); a(f'v_add_u32 {v(vQR)}, {HALF}, {v(vQR)}'); shifted['r'] = True
                if shifted['r']: off -= HALF
            assert 0 <= off < 65536
            a(f'ds_read_b64_tr_b16 {v(slot+2*rd,2)}, {v(reg)} offset:{off}')
    LA = 6
    nb = 0
    issued = 0
    N = 108
    def ensure_issue(upto):
        nonlocal issued, nb
        while issued < min(upto, N):
            need = groups_needed(issued // 6)
            while nb < need:
                a('s_barrier'); nb += 1
            issue_reads(issued); issued += 1
    st(1)
    ensure_issue(LA)
    st(2)
    for i in range(N):
        c, m = divmod(i, 6)
        outstanding = issued - i - 1
        w = f's_waitcnt lgkmcnt({2*outstanding})'
        if m == 0: w = f's_waitcnt vmcnt({18 - c}) lgkmcnt({2*outstanding})'
        a(w)
        slot = vA + 4 * (i % NSLOT)
        a(f'v_mfma_f32_16x16x32_bf16 {v(vACC+4*m,4)}, {v(slot,4)}, {v(vO+4*c,4)}, {v(vACC+4*m,4)}')
        ensure_issue(i + 1 + LA)
    assert nb == 9
    st(3)
    a('s_barrier')
    st(4)
    vB = 64
    for m in range(6):
        a(f'ds_read_b64_tr_b16 {v(vB+2*m,2)}, {v(vBA)} offset:{m*16*128}')
    a('s_waitcnt vmcnt(0)')
    a(f'v_sub_f32 {v(vOMG)}, 1.0, {v(vG)}')
    a(f'v_cvt_pk_bf16_f32 {v(vOMG)}, {v(vOMG)}, {v(vOMG)}')
    a(f'v_lshlrev_b32 {v(vOMG)}, 16, {v(vOMG)}')
    vT, vR = 80, 100
    for m in range(6):
        a(f's_waitcnt lgkmcnt({5-m})')
        t = vT + 4 * (m & 1)
        a(f'v_lshlrev_b32 {v(t)}, 16, {v(vB+2*m)}')
        a(f'v_and_b32 {v(t+1)}, 0xffff0000, {v(vB+2*m)}')
        a(f'v_lshlrev_b32 {v(t+2)}, 16, {v(vB+2*m+1)}')
        a(f'v_and_b32 {v(t+3)}, 0xffff0000, {v(vB+2*m+1)}')
        for r in range(4):
            a(f'v_mul_f32 {v(t+r)}, {v(vOMG)}, {v(t+r)}')
        for r in range(4):
            a(f'v_fmac_f32 {v(t+r)}, {v(vG)}, {v(vACC+4*m+r)}')
        o = vR + 4 * (m >> 1) + 2 * (m & 1)
        a(f'v_cvt_pk_bf16_f32 {v(o)}, {v(t)}, {v(t+1)}')
        a(f'v_cvt_pk_bf16_f32 {v(o+1)}, {v(t+2)}, {v(t+3)}')
        if m & 1:
            o = vR + 4 * (m >> 1)
            a(f'v_permlane16_swap_b32 {v(o)}, {v(o+2)}')
            a(f'v_permlane16_swap_b32 {v(o+1)}, {v(o+3)}')
            a(f'buffer_store_dwordx4 {v(o,4)}, {v(vST)}, {s(rOUT,4)}, {s(sSO)} offen offset:{(m>>1)*64}')
    st(5)
    a('s_waitcnt vmcnt(0)') if st.enabled else None
    st(6)
    st.flush()
    a('s_endpgm')

    a.label(f'{L}_loader')
    a(f's_sub_u32 {s(sW)}, {s(sW)}, 4')
    a(f's_mov_b32 {s(sT0)}, 0x5556')
    for i in range(3):
        a(f'v_add_u32 v3, {64*i}, v2')
        a('v_lshrrev_b32 v4, 2, v3')
        a(f'v_mul_u32_u24 v5, {s(sT0)}, v4')
        a('v_lshrrev_b32 v5, 16, v5')
        a('v_mul_u32_u24 v6, 12, v5')
        a('v_sub_u32 v6, v3, v6')
        a('v_lshrrev_b32 v7, 1, v5')
        a('v_and_b32 v7, 2, v7')
        a('v_xor_b32 v6, v6, v7')
        a('v_mul_u32_u24 v5, 1152, v5')
        a(f'v_lshl_add_u32 {v(10+i)}, v6, 4, v5')
        if i: a(f'v_subrev_u32 {v(10+i)}, {1024*i}, {v(10+i)}')
    a(f's_mul_i32 {s(sSO)}, {s(sW)}, {16*1152}')
    a(f's_mul_i32 {s(sT1)}, {s(sNB)}, 192')
    a(f's_add_u32 {s(sSO)}, {s(sSO)}, {s(sT1)}')
    a(f's_mul_i32 {s(sT0)}, {s(sW)}, {16*192}')
    def issue_group():
        a(f's_mov_b32 m0, {s(sT0)}')
        for i in range(3):
            a(f'buffer_load_dwordx4 {v(10+i)}, {s(rWO,4)}, {s(sSO)} offen offset:{1024*i} lds')
        a(f's_add_u32 {s(sSO)}, {s(sSO)}, {64*1152}')
        a(f's_add_u32 {s(sT0)}, {s(sT0)}, {64*192}')
    PRE = 4
    for j in range(PRE): issue_group()
    a('v_lshrrev_b32 v3, 3, v2')
    a('v_and_b32 v4, 7, v2')
    a('v_lshlrev_b32 v3, 12, v3')
    a('v_lshl_add_u32 v13, v4, 4, v3')
    sB1, sB2 = 30, 31
    a(f's_mul_i32 {s(sB1)}, {s(sNB)}, {96*4096}')
    a(f's_mul_i32 {s(sB2)}, {s(sW)}, {24*4096}')
    a(f's_add_u32 {s(sB1)}, {s(sB1)}, {s(sB2)}')
    a(f's_lshl_b32 {s(sB2)}, {s(sRB)}, 7')
    a(f's_add_u32 {s(sB1)}, {s(sB1)}, {s(sB2)}')
    a(f's_add_u32 {s(sB1)}, {s(sB1)}, {WS_B:#x}')
    a(f's_mul_i32 {s(sB2)}, {s(sW)}, 3072')
    a(f's_add_u32 {s(sB2)}, {s(sB2)}, {K2_LDS_B}')
    issued = PRE
    for j in range(9):
        a(f's_waitcnt vmcnt({3*(issued - j - 1)})')
        a('s_barrier')
        if issued < 9:
            issue_group(); issued += 1
        elif issued == 9:
            for i in range(3):
                a(f's_mov_b32 m0, {s(sB2)}')
                a(f'buffer_load_dwordx4 v13, {s(rWS,4)}, {s(sB1)} offen lds')
                a(f's_add_u32 {s(sB1)}, {s(sB1)}, {8*4096}')
                a(f's_add_u32 {s(sB2)}, {s(sB2)}, 1024')
            issued += 1
    a('s_waitcnt vmcnt(0)')
    st(3)
    a('s_barrier')
    st.flush()
    a.label(f'{L}_end')
    a('s_endpgm')
```

```python
from asmlib import *
import math, struct
NAME = 'gated_mix__linear_attn_block__ssm_conv_s4d__prompt'
KA = dict(x=0, wqkv=8, wo=16, u=24, lar=32, aim=40, cr=48, ci=56, ldt=64, dsk=72, gw=80, out=88, dbg=96, ws=104)
WS_O = 0x000000
WS_B = 0x240000
WS_G = 0x480000
WS_P = 0x490000
WS_T = 0x600000
WS_SIZE = 0x700000
XB = 2048 * 576 * 2
WB = 576 * 1728 * 2
WOB = 576 * 576 * 2
def f32(x): return '0x%08x' % struct.unpack('<I', struct.pack('<f', x))[0]
LOG2E = f32(math.log2(math.e))

def srd(a, d, base, nbytes):
    a(f's_mov_b32 {s(d)}, {s(base)}')
    a(f's_and_b32 {s(d+1)}, {s(base+1)}, 0xffff')
    a(f's_mov_b32 {s(d+2)}, {nbytes:#x}')
    a(f's_mov_b32 {s(d+3)}, 0x20000')

def kernel_desc(name, vgpr=256, sgpr=102):
    return f'''.section .rodata,"a"
.p2align 6
.amdhsa_kernel {name}
  .amdhsa_next_free_vgpr {vgpr}
  .amdhsa_next_free_sgpr {sgpr}
  .amdhsa_accum_offset {(vgpr + 3) // 4 * 4}
  .amdhsa_group_segment_fixed_size 0
  .amdhsa_kernarg_size 112
  .amdhsa_user_sgpr_count 2
  .amdhsa_user_sgpr_kernarg_segment_ptr 1
  .amdhsa_system_sgpr_workgroup_id_x 1
.end_amdhsa_kernel
'''

class Stamper:
    def __init__(self, a, region=0, enabled=True):
        self.a = a; self.region = region; self.enabled = enabled; self.keep = (0,)
    def __call__(self, k):
        if not self.enabled: return
        a = self.a
        if self.enabled == 'light' and k not in self.keep: return
        if k == 0:
            a('s_memrealtime s[100:101]')
        a(f's_memtime {s(70+2*k,2)}')
        a('s_waitcnt lgkmcnt(0)')
    def init(self):
        if not self.enabled: return
        for i in range(70, 102): self.a(f's_mov_b32 s{i}, 0')
    def flush(self):
        if not self.enabled: return
        a = self.a
        a('s_memrealtime s[98:99]')
        a(f's_load_dwordx2 s[66:67], s[0:1], {KA["ws"]}')
        a('s_waitcnt lgkmcnt(0)')
        a('s_mov_b32 s64, s66'); a('s_and_b32 s65, s67, 0xffff'); a(f's_mov_b32 s66, {WS_SIZE:#x}'); a('s_mov_b32 s67, 0x20000')
        a('s_mov_b64 exec, -1')
        a('v_lshrrev_b32 v250, 6, v0')
        a('v_lshlrev_b32 v250, 7, v250')
        a('s_lshl_b32 s68, s2, 10')
        a(f's_add_u32 s68, s68, {WS_T + self.region:#x}')
        a('s_mov_b64 exec, 1')
        for k in range(8):
            for i in range(4): a(f'v_mov_b32 v{252+i}, s{70+4*k+i}')
            a(f'buffer_store_dwordx4 v[252:255], v250, s[64:67], s68 offen offset:{16*k}')
        a('s_waitcnt vmcnt(0)')
```

```python
from common import *
import math, struct
def f32(x): return '0x%08x' % struct.unpack('<I', struct.pack('<f', x))[0]
LOG2E = f32(math.log2(math.e))

G_NWG = 128
SLOT = 40960
G_LDS = 4 * SLOT
OFF_K, OFF_V = 16384, 28672
RED = 0
FRG = 24576
DUM = 32768
TOFF = (0, 40, 72, 112)

def gen_g(a, gid='s2', stamp=None, PF=True, ROT=False):
    L = 'g'
    st = stamp if stamp else Stamper(a, enabled=False)
    st.init()
    st(0)
    sX, sGW, sDBG = 4, 8, 12
    rX, rW, rWS, rGW, rDBG = 16, 20, 24, 28, 32
    sW, sRB, sHG, sKS, sSL, sT0, sT1, sT2, sI = 36, 37, 38, 39, 40, 41, 42, 43, 44
    sXB, sWB, sLX, sLW, sID = 45, 46, 47, 48, 49
    sL2 = 50
    sPI = 62
    sM1, sM2, sM3, sMG, sMO = 52, 54, 56, 58, 60
    a(f's_load_dwordx4 {s(sX,4)}, s[0:1], {KA["x"]}')
    a(f's_load_dwordx4 {s(sGW,4)}, s[0:1], {KA["gw"]}')
    a(f's_load_dwordx4 {s(sDBG,4)}, s[0:1], {KA["dbg"]}')
    vL = 1
    a('v_lshrrev_b32 v2, 6, v0')
    a(f'v_and_b32 {v(vL)}, 63, v0')
    a(f'v_readfirstlane_b32 {s(sW)}, v2')
    a(f's_lshr_b32 {s(sT1)}, {gid}, 3')
    a(f's_and_b32 {s(sT0)}, {s(sT1)}, 3')
    a(f's_lshr_b32 {s(sT1)}, {s(sT1)}, 2')
    a(f's_and_b32 {s(sRB)}, {gid}, 6')
    a(f's_lshl1_add_u32 {s(sRB)}, {s(sRB)}, {s(sT0)}')
    a(f's_and_b32 {s(sHG)}, {gid}, 1')
    a(f's_lshl2_add_u32 {s(sHG)}, {s(sHG)}, {s(sT1)}')
    a(f's_add_u32 {s(sKS)}, {s(sT0)}, {s(sT1)}')
    a(f's_and_b32 {s(sKS)}, {s(sKS)}, 3')
    a(f's_mul_i32 {s(sKS)}, {s(sKS)}, 9')
    a(f's_add_u32 {s(sKS)}, {s(sKS)}, 2')
    a(f's_lshr_b32 {s(sKS)}, {s(sKS)}, 2')
    if not ROT: a(f's_mov_b32 {s(sKS)}, 0')
    a('s_waitcnt lgkmcnt(0)')
    srd(a, rX, sX, XB); srd(a, rW, sX + 2, 576 * 1728 * 2); srd(a, rWS, sDBG + 2, WS_SIZE); srd(a, rDBG, sDBG, 256)
    a(f's_lshl4_add_u32 {s(sID)}, {s(sHG)}, {s(sRB)}')
    a(f's_cmp_ge_u32 {s(sW)}, 4')
    a(f's_cbranch_scc1 {L}_loader')

    st(1)
    vXA, vWA, vSH, vSQ = 2, 4, 8, 9
    vT = 10
    X0, ACC, RING = 16, 160, 232
    NS = 6
    for i in range(4): a(f'v_mov_b32 {v(RING+i)}, 0')
    a(f's_lshl2_add_u32 {s(sT0)}, {s(sID)}, {s(sW)}')
    a(f's_mul_i32 {s(sT0)}, {s(sT0)}, 1536')
    a(f's_add_u32 {s(sT0)}, {s(sT0)}, {WS_P:#x}')
    a(f'v_lshlrev_b32 v10, 4, {v(vL)}')
    a(f'v_lshlrev_b32 v11, 3, {v(vL)}')
    a(f'buffer_store_dwordx4 {v(RING,4)}, v10, {s(rWS,4)}, {s(sT0)} offen sc1')
    a(f'buffer_store_dwordx2 {v(RING,2)}, v11, {s(rWS,4)}, {s(sT0)} offen offset:1024 sc1')
    a(f'v_and_b32 v10, 15, {v(vL)}')
    a(f'v_lshrrev_b32 v11, 4, {v(vL)}')
    a('v_lshrrev_b32 v12, 1, v10')
    a('v_xor_b32 v12, v12, v11')
    a('v_lshlrev_b32 v13, 7, v10')
    a(f's_lshl_b32 {s(sT0)}, {s(sW)}, 12')
    a(f'v_add_u32 v13, {s(sT0)}, v13')
    a(f'v_lshl_add_u32 {v(vXA)}, v12, 4, v13')
    a(f'v_xor_b32 {v(vXA+1)}, 64, {v(vXA)}')
    a(f'v_bfe_u32 v12, {v(vL)}, 2, 2')
    a('v_lshl_add_u32 v12, v11, 3, v12')
    a('v_mul_u32_u24 v12, 192, v12')
    a(f'v_and_b32 v13, 3, {v(vL)}')
    a('v_and_b32 v14, 1, v11')
    a('v_lshlrev_b32 v14, 5, v14')
    a(f's_and_b32 {s(sT0)}, {s(sHG)}, 3')
    a(f's_lshl_b32 {s(sT0)}, {s(sT0)}, 4')
    a(f'v_lshl_add_u32 v15, v13, 3, {s(sT0)}')
    for h in range(4):
        a(f'v_add_u32 v10, {TOFF[h]}, v15')
        a('v_xor_b32 v10, v10, v14')
        a(f'v_add_u32 {v(vWA+h)}, v10, v12')
    a('v_and_b32 v10, 1, v13')
    a('v_mul_u32_u24 v10, 72, v10')
    a(f'v_add3_u32 v10, v10, {s(sT0)}, 32')
    a('v_xor_b32 v10, v10, v14')
    a('v_add_u32 v10, v10, v12')
    a('v_lshrrev_b32 v13, 1, v13')
    a(f'v_mul_u32_u24 {v(vSQ)}, {OFF_V - OFF_K}, v13')
    a(f'v_add_u32 {v(vSH)}, v10, {v(vSQ)}')
    a(f's_mov_b32 {s(sL2)}, {LOG2E}')
    a(f's_mov_b32 {s(sL2+1)}, {LOG2E}')
    def mask(sreg, pred):
        m = sum(1 << l for l in range(64) if pred(l))
        a(f's_mov_b32 {s(sreg)}, {m & 0xffffffff:#x}')
        a(f's_mov_b32 {s(sreg+1)}, {m >> 32:#x}')
    owner = lambda c: c if c < 4 else ((c - 8) >> 1 if c >= 8 else 0)
    mask(sM1, lambda l: owner(l & 15) == 1); mask(sM2, lambda l: owner(l & 15) == 2); mask(sM3, lambda l: owner(l & 15) == 3)
    mask(sMG, lambda l: (l >> 4) == 1); mask(sMO, lambda l: (l & 15) < 8)
    addr_regs = [vXA, vXA + 1, vWA, vWA + 1, vWA + 2, vWA + 3, vSH]

    class Pipe:
        def __init__(self): self.fifo = []
        def issue(self, text, tag): a(text); self.fifo.append(tag)
        def wait(self, tags):
            idx = max([i for i, t in enumerate(self.fifo) if t in tags], default=-1)
            if idx < 0: return
            n = len(self.fifo) - idx - 1
            assert n <= 15
            a(f's_waitcnt lgkmcnt({n})'); self.fifo = self.fifo[idx + 1:]
        def drain(self):
            a('s_waitcnt lgkmcnt(0)'); self.fifo = []
    P = Pipe()
    cur_slot = [0]
    def move_slot(new, regs):
        d = (new - cur_slot[0]) * SLOT
        cur_slot[0] = new
        if d == 0: return
        for r in regs:
            if d > 0: a(f'v_add_u32 {v(r)}, {d}, {v(r)}')
            else: a(f'v_subrev_u32 {v(r)}, {-d}, {v(r)}')

    def run_phase(N, loads_of, wait_fn, mfmas_of, stage_of, enter_stage, DELAY=2, extra=None):
        q = [(n, t, tag) for n in range(N) for (t, tag) in loads_of(n)]
        stage = [None]; hold = [0]
        def pump(k, limit, force=False):
            while q and k > 0 and q[0][0] <= limit:
                sg = stage_of(q[0][0])
                if sg != stage[0]:
                    if not force: return
                    enter_stage(sg); stage[0] = sg; hold[0] = 0
                n, t, tag = q.pop(0)
                P.issue(t() if callable(t) else t, tag); k -= 1
        pump(99, NS - 2, True)
        for n in range(N):
            pump(99, n, True)
            wait_fn(n)
            for m in mfmas_of(n):
                a(m)
                backlog = sum(1 for x in q if x[0] <= n + NS - 2)
                pump(2 if backlog > 1 else 1, n + NS - 1)
                if extra: extra(n)
            if q and stage_of(q[0][0]) != stage[0] and q[0][0] <= n + NS - 1:
                hold[0] += 1
                if hold[0] > DELAY: pump(1, n + NS - 1, True)

    kvg = [(i, kk, T) for i in range(9) for kk in range(2) for T in range(9)]
    xreg = lambda i, kk, rt: X0 + ((2 * i + kk) * 2 + rt) * 4
    def kv_loads(n):
        i, kk, T = kvg[n]
        out = []
        if T == 0:
            for rt in range(2):
                out.append((f'ds_read_b128 {v(xreg(i,kk,rt),4)}, {v(vXA+kk)} offset:{2048*rt}', ('x', i, kk)))
        slot = RING + 4 * (n % NS)
        if T < 4: reg, so = vWA + T, OFF_K
        elif T == 4: reg, so = vSH, OFF_K
        else: reg, so = vWA + T - 5, OFF_V
        for rd in range(2):
            out.append((f'ds_read_b64_tr_b16 {v(slot+2*rd,2)}, {v(reg)} offset:{so + (32*kk + 4*rd)*192}', ('w', n)))
        return out
    def kv_mfmas(n):
        i, kk, T = kvg[n]
        slot = RING + 4 * (n % NS)
        out = []
        for rt in range(2):
            d = v(ACC + 8 * T + 4 * rt, 4)
            out.append(f'v_mfma_f32_16x16x32_bf16 {d}, {v(xreg(i,kk,rt),4)}, {v(slot,4)}, {d if (i or kk) else 0}')
        return out
    def kv_enter(sg):
        if sg: P.drain()
        if sg == 6: a('s_waitcnt vmcnt(0)')
        a('s_barrier')
        move_slot(sg % 4, addr_regs)
        if sg in (0, 1, 4, 8): st({0:2, 1:3, 4:4, 8:5}[sg])
        if sg == 6:
            a(f's_cmp_lg_u32 {s(sW)}, 0')
            a(f's_cbranch_scc1 {L}_noflag ;nopad')
            a('s_mov_b64 exec, 1')
            a(f'v_mov_b32 {v(vT)}, 0')
            a(f'v_mov_b32 {v(vT+1)}, 1')
            a(f'buffer_store_byte {v(vT+1)}, {v(vT)}, {s(rDBG,4)}, {s(sID)} offen sc1')
            a('s_mov_b64 exec, -1')
            a.label(f'{L}_noflag')
    run_phase(len(kvg), kv_loads, lambda n: P.wait({('w', n), ('x', kvg[n][0], kvg[n][1])}), kv_mfmas, lambda n: kvg[n][0], kv_enter)
    a('s_barrier')
    st(6)
    base = lambda T: ACC + 8 * T
    def pack(dst, src):
        for p in range(4): a(f'v_cvt_pk_bf16_f32 {v(dst+p)}, {v(src+2*p)}, {v(src+2*p+1)}')
    def phi_pairs(pairs, pre=True):
        for j in range(0, len(pairs), 2):
            grp = pairs[j:j+2]
            if pre:
                for k, (r, d) in enumerate(grp): a(f'v_cvt_pk_bf16_f32 {v(vT+4+k)}, {v(r)}, {v(r+1)}')
                for k, (r, d) in enumerate(grp):
                    a(f'v_lshlrev_b32 {v(r)}, 16, {v(vT+4+k)}')
                    a(f'v_and_b32 {v(r+1)}, 0xffff0000, {v(vT+4+k)}')
            for k, (r, d) in enumerate(grp): a(f'v_pk_mul_f32 {v(vT+2*k,2)}, {v(r,2)}, {s(sL2,2)}')
            for k, (r, d) in enumerate(grp):
                a(f'v_exp_f32 {v(vT+2*k)}, {v(vT+2*k)} clamp')
                a(f'v_max_f32 {v(r)}, {f32(1e-6)}, {v(r)}')
                a(f'v_exp_f32 {v(vT+2*k+1)}, {v(vT+2*k+1)} clamp')
                a(f'v_max_f32 {v(r+1)}, {f32(1e-6)}, {v(r+1)}')
            for k, (r, d) in enumerate(grp): a(f'v_pk_add_f32 {v(r,2)}, {v(r,2)}, {v(vT+2*k,2)}')
            for k, (r, d) in enumerate(grp): a(f'v_cvt_pk_bf16_f32 {v(d)}, {v(r)}, {v(r+1)}')
    BS = RING
    pack(BS, base(4))
    a(f'v_mov_b32 {v(vT)}, 0x3f803f80')
    for p in range(4): a(f'v_cndmask_b32 {v(BS+p)}, {v(BS+p)}, {v(vT)}, {s(sMO,2)}')
    for h in range(4): pack(base(5 + h), base(5 + h))
    MAIN = lambda h: base(5 + h) + 4
    COL = lambda h: RING + 4 + 4 * h
    ROW = lambda h: base(h) + 4
    SS = base(4) + 4
    for h in range(4):
        phi_pairs([(base(h) + 2 * p, base(h) + p) for p in range(4)], False)
        a(f'v_mfma_f32_16x16x32_bf16 {v(MAIN(h),4)}, {v(base(h),4)}, {v(base(5+h),4)}, 0')
        a(f'v_mfma_f32_16x16x32_bf16 {v(COL(h),4)}, {v(base(h),4)}, {v(BS,4)}, 0')
    phi_pairs([(base(4) + 2 * p, base(4) + p) for p in range(4)], False)
    for h in range(4):
        a(f'v_mfma_f32_16x16x32_bf16 {v(ROW(h),4)}, {v(base(4),4)}, {v(base(5+h),4)}, 0')
    a(f'v_mfma_f32_16x16x32_bf16 {v(SS,4)}, {v(base(4),4)}, {v(BS,4)}, 0')
    a(f's_mul_i32 {s(sT0)}, {s(sW)}, 6144')
    a(f'v_lshlrev_b32 {v(vT)}, 4, {v(vL)}')
    a(f'v_add_u32 {v(vT)}, {s(sT0)}, {v(vT)}')
    for h in range(4): a(f'ds_write_b128 {v(vT)}, {v(MAIN(h),4)} offset:{RED + 1024*h}')
    for h, m in ((1, sM1), (2, sM2), (3, sM3)):
        for r in range(4): a(f'v_cndmask_b32 {v(COL(0)+r)}, {v(COL(0)+r)}, {v(COL(h)+r)}, {s(m,2)}')
    a(f'ds_write_b128 {v(vT)}, {v(COL(0),4)} offset:{RED + 4096}')
    for r in range(2): a(f'v_cndmask_b32 {v(ROW(0)+r)}, {v(ROW(0)+r)}, {v(ROW(2)+r)}, {s(sMG,2)}')
    for r in range(2, 4): a(f'v_cndmask_b32 {v(ROW(0)+r)}, {v(ROW(1)+r)}, {v(ROW(3)+r)}, {s(sMG,2)}')
    for r in range(4): a(f'v_permlane32_swap_b32 {v(ROW(0)+r)}, {v(SS+r)}')
    a(f'ds_write_b128 {v(vT)}, {v(ROW(0),4)} offset:{RED + 5120}')
    a('s_waitcnt lgkmcnt(0)')
    st(7)
    a('s_barrier')
    st(8)
    a(f'v_sub_u32 {v(vSH)}, {v(vSH)}, {v(vSQ)}')
    qregs = [vWA, vWA + 1, vWA + 2, vWA + 3, vSH]
    qg = [(i, kk, T) for i in range(9) for kk in range(2) for T in range(5)]
    QA = lambda T, rt: ACC + (2 * T + rt) * 4
    def q_loads(n):
        i, kk, T = qg[n]
        slot = RING + 4 * (n % NS)
        return [(f'ds_read_b64_tr_b16 {v(slot+2*rd,2)}, {v(qregs[T])} offset:{(i%3)*12288 + (32*kk + 4*rd)*192}', ('w', n)) for rd in range(2)]
    def q_mfmas(n):
        i, kk, T = qg[n]
        slot = RING + 4 * (n % NS)
        out = []
        for rt in range(2):
            d = v(QA(T, rt), 4)
            out.append(f'v_mfma_f32_16x16x32_bf16 {d}, {v(slot,4)}, {v(xreg(i,kk,rt),4)}, {d if (i or kk) else 0}')
        return out
    run_phase(len(qg), q_loads, lambda n: P.wait({('w', n)}), q_mfmas, lambda n: qg[n][0] // 3, lambda sg: move_slot(1 + sg, qregs), DELAY=-1)
    st(9)
    for T in (4, 0, 1, 2, 3):
        phi_pairs([(QA(T, rt) + 2 * p, QA(T, rt) + p) for rt in range(2) for p in range(2)])
        if T < 4:
            for rt in range(2): a(f'v_mov_b64 {v(QA(T,rt)+2,2)}, {v(QA(4,rt),2)}')
    a(f's_lshl_b32 {s(sT0)}, {s(sRB)}, 3')
    a(f's_lshl_b32 {s(sT1)}, {s(sW)}, 1')
    a(f's_add_u32 {s(sT0)}, {s(sT0)}, {s(sT1)}')
    a(f's_mul_i32 {s(sT0)}, {s(sT0)}, {18*1024}')
    a(f's_lshl_b32 {s(sT1)}, {s(sHG)}, 11')
    a(f's_add_u32 {s(sT1)}, {s(sT1)}, {s(sT0)}')
    a(f's_lshr_b32 {s(sT2)}, {s(sHG)}, 2')
    a(f's_lshl_b32 {s(sT2)}, {s(sT2)}, 10')
    a(f's_add_u32 {s(sT0)}, {s(sT0)}, {s(sT2)}')
    a(f's_and_b32 {s(sT2)}, {s(sHG)}, 3')
    a(f's_lshl_b32 {s(sT2)}, {s(sT2)}, 2')
    a(f's_add_u32 {s(sT0)}, {s(sT0)}, {s(sT2)}')
    a(f's_add_u32 {s(sT0)}, {s(sT0)}, {16*1024}')
    a(f'v_lshlrev_b32 {v(vT)}, 4, {v(vL)}')
    a(f'v_add_u32 {v(vT+1)}, {18*1024}, {v(vT)}')
    st(10)
    a('s_barrier')
    st(11)
    FR = 16; NUMO = 48; REMO = 80; RC = 88; OUT = 104
    for f in (4, 5, 6, 7, 0, 1, 2, 3):
        a(f'ds_read_b128 {v(FR+4*f,4)}, {v(vT)} offset:{FRG + 1024*f}')
    for h in range(4):
        a(f's_waitcnt lgkmcnt({7-h})')
        for rt in range(2):
            d = v(REMO + 4 * rt, 4)
            a(f'v_mfma_f32_16x16x32_bf16 {d}, {v(FR+16+4*h,4)}, {v(QA(h,rt),4)}, {d if h else 0}')
    for h in range(4):
        a(f's_waitcnt lgkmcnt({3-h})')
        for rt in range(2):
            a(f'v_mfma_f32_16x16x32_bf16 {v(NUMO+(2*h+rt)*4,4)}, {v(FR+4*h,4)}, {v(QA(h,rt),4)}, 0')
    for rt in range(2):
        r = RC + 8 * rt; dn = REMO + 4 * rt + 2
        a(f'v_cvt_pk_bf16_f32 {v(r)}, {v(dn)}, {v(dn)}')
        a(f'v_lshlrev_b32 {v(r)}, 16, {v(r)}')
        a(f'v_add_f32 {v(r)}, {f32(1e-6)}, {v(r)}')
        a(f'v_cvt_pk_bf16_f32 {v(r)}, {v(r)}, {v(r)}')
        a(f'v_lshlrev_b32 {v(r)}, 16, {v(r)}')
        a(f'v_rcp_f32 {v(r+4)}, {v(r)}')
    for rt in range(2):
        r = RC + 8 * rt
        a(f'v_mov_b32 {v(r)}, {v(r+4)}')
        a(f'v_mov_b32 {v(r+1)}, {v(r+4)}')
    for rt in range(2):
        r = RC + 8 * rt
        a(f'v_permlane16_swap_b32 {v(r)}, {v(r+1)}')
    for rt in range(2):
        r = RC + 8 * rt
        a(f'v_mov_b32 {v(r+2)}, {v(r)}')
        a(f'v_mov_b32 {v(r+3)}, {v(r+1)}')
    for rt in range(2):
        r = RC + 8 * rt
        a(f'v_permlane32_swap_b32 {v(r)}, {v(r+2)}')
        a(f'v_permlane32_swap_b32 {v(r+1)}, {v(r+3)}')
    for rt in range(2):
        r = RC + 8 * rt; o = OUT + 12 * rt
        for h in range(4):
            n = NUMO + (2 * h + rt) * 4
            sel = f'op_sel:[0,{h&1}] op_sel_hi:[1,{h&1}]'
            a(f'v_pk_mul_f32 {v(n,2)}, {v(n,2)}, {v(r+(h&2),2)} {sel}')
            a(f'v_pk_mul_f32 {v(n+2,2)}, {v(n+2,2)}, {v(r+(h&2),2)} {sel}')
            a(f'v_cvt_pk_bf16_f32 {v(o+2*h)}, {v(n)}, {v(n+1)}')
            a(f'v_cvt_pk_bf16_f32 {v(o+2*h+1)}, {v(n+2)}, {v(n+3)}')
            if h & 1:
                a(f'buffer_store_dwordx4 {v(o+2*h-2,4)}, {v(vT+rt)}, {s(rWS,4)}, {s(sT1)} offen offset:{(h>>1)*1024}')
        n = REMO + 4 * rt
        a(f'v_pk_mul_f32 {v(n,2)}, {v(n,2)}, {v(r+4,2)} op_sel:[0,0] op_sel_hi:[1,0]')
        a(f'v_cvt_pk_bf16_f32 {v(o+8)}, {v(n)}, {v(n+1)}')
        a(f'buffer_store_dword {v(o+8)}, {v(vT+rt)}, {s(rWS,4)}, {s(sT0)} offen')
    st(12)
    a('s_waitcnt vmcnt(0)') if st.enabled else None
    st(13)
    st.flush()
    a('s_endpgm')

    a.label(f'{L}_loader')
    a('s_setprio 3')
    st(1)
    a(f's_sub_u32 {s(sW)}, {s(sW)}, 4')
    VX, VW = 4, 8
    a(f'v_lshrrev_b32 v2, 3, {v(vL)}')
    a('v_mul_u32_u24 v2, 1152, v2')
    a(f'v_and_b32 v3, 7, {v(vL)}')
    a(f'v_lshrrev_b32 v12, 4, {v(vL)}')
    a('v_xor_b32 v3, v3, v12')
    a(f'v_lshl_add_u32 {v(VX)}, v3, 4, v2')
    a(f'v_xor_b32 {v(VX+1)}, 64, {v(VX)}')
    a(f'v_add_u32 {v(VX+2)}, {2*(9216-1024)}, {v(VX)}')
    a(f'v_add_u32 {v(VX+3)}, {3*(9216-1024)}, {v(VX+1)}')
    a(f'v_add_u32 {v(VX+1)}, {9216-1024}, {v(VX+1)}')
    a(f's_mov_b32 {s(sT0)}, 0x5556')
    for i in range(3):
        a(f'v_add_u32 v3, {64*i}, {v(vL)}')
        a('v_lshrrev_b32 v12, 2, v3')
        a(f'v_mul_u32_u24 v13, {s(sT0)}, v12')
        a('v_lshrrev_b32 v13, 16, v13')
        a('v_mul_u32_u24 v14, 12, v13')
        a('v_sub_u32 v14, v3, v14')
        a('v_lshrrev_b32 v15, 2, v13')
        a('v_and_b32 v15, 2, v15')
        a('v_xor_b32 v14, v14, v15')
        a('v_mul_u32_u24 v13, 3456, v13')
        a(f'v_lshl_add_u32 {v(VW+i)}, v14, 4, v13')
        if i: a(f'v_subrev_u32 {v(VW+i)}, {1024*i}, {v(VW+i)}')
    a(f's_lshl_b32 {s(sT0)}, {s(sRB)}, 2')
    a(f's_add_u32 {s(sT0)}, {s(sT0)}, {s(sW)}')
    a(f's_mul_i32 {s(sXB)}, {s(sT0)}, {32*1152}')
    a(f's_mul_i32 {s(sWB)}, {s(sHG)}, 144')
    a(f's_and_b32 {s(sWB)}, {s(sWB)}, 0xffc0')
    a(f's_mul_i32 {s(sT0)}, {s(sW)}, {16*3456}')
    a(f's_add_u32 {s(sWB)}, {s(sWB)}, {s(sT0)}')
    a(f's_lshl_b32 {s(sLX)}, {s(sW)}, 12')
    a(f's_mul_i32 {s(sLW)}, {s(sW)}, 3072')
    a(f's_mov_b32 {s(sSL)}, 0')
    def adv_ks():
        a(f's_add_u32 {s(sKS)}, {s(sKS)}, 1')
        a(f's_cmp_eq_u32 {s(sKS)}, 9')
        a(f's_cselect_b32 {s(sKS)}, 0, {s(sKS)}')
    def adv_slot():
        a(f's_add_u32 {s(sSL)}, {s(sSL)}, {SLOT}')
        a(f's_cmp_eq_u32 {s(sSL)}, {4*SLOT}')
        a(f's_cselect_b32 {s(sSL)}, 0, {s(sSL)}')
    a(f's_mov_b32 {s(sI)}, 0')
    a.label(f'{L}_lkv')
    a(f's_cmp_lt_u32 {s(sI)}, 3')
    a(f's_cbranch_scc1 {L}_lkv1')
    a('s_waitcnt vmcnt(20)')
    a('s_barrier')
    a.label(f'{L}_lkv1')
    a(f's_lshl_b32 {s(sT0)}, {s(sKS)}, 7')
    a(f's_add_u32 {s(sT0)}, {s(sT0)}, {s(sXB)}')
    a(f's_add_u32 m0, {s(sSL)}, {s(sLX)}')
    a(f's_mul_i32 {s(sT1)}, {s(sKS)}, {64*3456}')
    for i in range(4):
        a(f'buffer_load_dwordx4 {v(VX+i)}, {s(rX,4)}, {s(sT0)} offen offset:{1024*i} lds')
    a(f's_add_u32 {s(sT1)}, {s(sT1)}, {s(sWB)}')
    a(f's_add_u32 {s(sT2)}, {s(sSL)}, {s(sLW)}')
    for seg, off in ((1, OFF_K), (2, OFF_V)):
        a(f's_add_u32 m0, {s(sT2)}, {off}')
        a(f's_add_u32 {s(sT1)}, {s(sT1)}, 1152')
        for i in range(3):
            a(f'buffer_load_dwordx4 {v(VW+i)}, {s(rW,4)}, {s(sT1)} offen offset:{1024*i} lds')
    adv_ks(); adv_slot()
    a(f's_add_u32 {s(sI)}, {s(sI)}, 1')
    a(f's_cmp_lt_u32 {s(sI)}, 9')
    a(f's_cbranch_scc1 {L}_lkv')
    vC, vGg, vD0 = 20, 21, 22
    a(f'v_and_b32 {v(vC)}, 15, {v(vL)}')
    a(f'v_lshrrev_b32 {v(vGg)}, 4, {v(vL)}')
    a(f's_and_b32 {s(sPI)}, {s(sW)}, 1')
    a(f'v_subrev_u32 v24, 8, {v(vC)}')
    a('v_ashrrev_i32 v24, 1, v24')
    a(f'v_and_b32 v25, 1, {v(vC)}')
    a(f'v_mov_b32 v28, {DUM}')
    a(f's_cmp_ge_u32 {s(sW)}, 2')
    a(f's_cbranch_scc1 {L}_sc1')
    a(f'v_cmp_gt_u32 vcc, 8, {v(vC)}')
    a(f'v_cndmask_b32 v16, v24, {v(vC)}, vcc')
    a('v_cndmask_b32 v17, v25, 2, vcc')
    a(f'v_mul_u32_u24 v16, {1024 + 64}, v16')
    a('v_lshl_add_u32 v16, v17, 4, v16')
    a(f'v_lshl_add_u32 v16, {v(vGg)}, 8, v16')
    a(f's_lshl_b32 {s(sT0)}, {s(sPI)}, 2')
    a(f's_add_u32 {s(sT0)}, {s(sT0)}, {FRG + 4096}')
    a(f'v_add_u32 v16, {s(sT0)}, v16')
    a(f'v_and_b32 v17, 12, {v(vC)}')
    a('v_cmp_eq_u32 vcc, 4, v17')
    a(f'v_cndmask_b32 {v(vD0)}, v16, v28, vcc')
    a(f's_branch {L}_sc2')
    a.label(f'{L}_sc1')
    a(f'v_and_b32 v16, 1, {v(vGg)}')
    a(f'v_lshl_add_u32 v17, v16, 1, {s(sPI)}')
    a('v_lshlrev_b32 v18, 10, v17')
    a('v_lshl_add_u32 v18, v16, 8, v18')
    a(f's_lshl_b32 {s(sT0)}, {s(sPI)}, 2')
    a(f's_add_u32 {s(sT0)}, {s(sT0)}, {FRG + 8}')
    a(f'v_add_u32 v18, {s(sT0)}, v18')
    a(f'v_lshl_add_u32 v19, {v(vC)}, 4, v18')
    a('v_lshl_add_u32 v26, v17, 6, v18')
    a('v_add_u32 v26, 4096, v26')
    a('v_lshl_add_u32 v27, v25, 4, v26')
    a('v_cmp_eq_u32 vcc, v24, v17')
    a('v_cndmask_b32 v27, v28, v27, vcc')
    a('v_add_u32 v26, 32, v26')
    a(f'v_cmp_eq_u32 vcc, 0, {v(vC)}')
    a('v_cndmask_b32 v27, v27, v26, vcc')
    a(f'v_cmp_gt_u32 vcc, 32, {v(vL)}')
    a(f'v_cndmask_b32 {v(vD0)}, v27, v19, vcc')
    a.label(f'{L}_sc2')
    a(f's_mov_b32 {s(sI)}, 0')
    a.label(f'{L}_lq')
    a('s_waitcnt vmcnt(18)')
    a('s_barrier')
    a(f's_add_u32 {s(sT2)}, {s(sSL)}, {s(sLW)}')
    for b in range(3):
        a(f's_mul_i32 {s(sT1)}, {s(sKS)}, {64*3456}')
        a(f's_add_u32 m0, {s(sT2)}, {12288*b}')
        a(f's_add_u32 {s(sT1)}, {s(sT1)}, {s(sWB)}')
        for i in range(3):
            a(f'buffer_load_dwordx4 {v(VW+i)}, {s(rW,4)}, {s(sT1)} offen offset:{1024*i} lds')
        adv_ks()
    adv_slot()
    a(f's_add_u32 {s(sI)}, {s(sI)}, 1')
    a(f's_cmp_lt_u32 {s(sI)}, 3')
    a(f's_cbranch_scc1 {L}_lq')
    st(4)
    a('s_barrier')
    st(5)
    srd(a, rGW, sGW, 1152)
    GX, GWV = 32, 50
    a(f's_lshl_b32 {s(sT0)}, {s(sRB)}, 7')
    a(f's_lshl4_add_u32 {s(sT0)}, {s(sHG)}, {s(sT0)}')
    a(f's_lshl2_add_u32 {s(sXB)}, {s(sW)}, {s(sT0)}')
    a(f's_mul_i32 {s(sT0)}, {s(sXB)}, 1152')
    a(f'v_and_b32 v12, 31, {v(vL)}')
    a('v_lshlrev_b32 v12, 2, v12')
    a(f'v_lshrrev_b32 v13, 5, {v(vL)}')
    a('v_mul_u32_u24 v13, 1152, v13')
    a('v_add_u32 v13, v13, v12')
    for j in range(9):
        a(f'buffer_load_dword {v(GWV+j)}, v12, {s(rGW,4)}, 0 offen offset:{128*j}')
    for p in range(2):
        for j in range(9):
            a(f'buffer_load_dword {v(GX+9*p+j)}, v13, {s(rX,4)}, {s(sT0)} offen offset:{2304*p + 128*j}')
    a(f's_lshl_b32 {s(sT2)}, {s(sHG)}, 4')
    a('v_mov_b32 v14, 0')
    a(f'buffer_load_dwordx4 v[8:11], v14, {s(rDBG,4)}, {s(sT2)} offen sc1')
    for i in range(4): a(f'v_mov_b32 {v(16+i)}, 0')
    a(f'v_lshlrev_b32 v2, 4, {v(vL)}')
    a(f'v_lshlrev_b32 v4, 3, {v(vL)}')
    a(f's_lshl_b32 {s(sT0)}, {s(sW)}, 11')
    a(f'v_add_u32 v3, {s(sT0)}, v2')
    a(f'ds_write_b128 v3, {v(16,4)} offset:{FRG}')
    a(f'ds_write_b128 v3, {v(16,4)} offset:{FRG + 1024}')
    a(f's_lshl_b32 {s(sT0)}, {s(sW)}, 10')
    a(f'v_add_u32 v3, {s(sT0)}, v2')
    a(f's_lshr_b32 {s(sT0)}, {s(sW)}, 1')
    a(f's_lshl_b32 {s(sT0)}, {s(sT0)}, 10')
    a(f's_lshl3_add_u32 {s(sT0)}, {s(sPI)}, {s(sT0)}')
    a(f'v_add_u32 v5, {s(sT0)}, v2')
    a(f's_lshl2_add_u32 {s(sT0)}, {s(sID)}, {s(sW)}')
    a(f's_mul_i32 {s(sT0)}, {s(sT0)}, 1536')
    a(f's_add_u32 {s(sT0)}, {s(sT0)}, {WS_P:#x}')
    a('s_waitcnt vmcnt(28) lgkmcnt(0)')
    st(7)
    a('s_barrier')
    st(8)
    S0 = 64
    for w in range(4):
        a(f'ds_read_b128 {v(S0+6*w,4)}, v3 offset:{RED + 6144*w}')
        a(f'ds_read_b64 {v(S0+6*w+4,2)}, v5 offset:{RED + 6144*w + 4096}')
    a('s_waitcnt lgkmcnt(4)')
    for p in range(3): a(f'v_pk_add_f32 {v(S0+2*p,2)}, {v(S0+2*p,2)}, {v(S0+6+2*p,2)}')
    a('s_waitcnt lgkmcnt(0)')
    for p in range(3): a(f'v_pk_add_f32 {v(S0+12+2*p,2)}, {v(S0+12+2*p,2)}, {v(S0+18+2*p,2)}')
    for p in range(3): a(f'v_pk_add_f32 {v(S0+2*p,2)}, {v(S0+2*p,2)}, {v(S0+12+2*p,2)}')
    for i in range(6): a(f'v_or_b32 {v(S0+i)}, 1, {v(S0+i)}')
    st(2)
    a(f'buffer_store_dwordx4 {v(S0,4)}, v2, {s(rWS,4)}, {s(sT0)} offen sc1')
    st(3)
    a(f'buffer_store_dwordx2 {v(S0+4,2)}, v4, {s(rWS,4)}, {s(sT0)} offen offset:1024 sc1')
    st(9)
    a(f's_mov_b32 {s(sI)}, 0')
    a('s_waitcnt vmcnt(2)')
    a.label(f'{L}_fl')
    a('v_and_b32 v8, v8, v9')
    a('v_and_b32 v10, v10, v11')
    a('v_and_b32 v8, v8, v10')
    a(f'v_readfirstlane_b32 {s(sT0)}, v8')
    a(f's_cmp_eq_u32 {s(sT0)}, 0x01010101')
    a(f's_cbranch_scc1 {L}_flok')
    a('s_sleep 4')
    a(f'buffer_load_dwordx4 v[8:11], v14, {s(rDBG,4)}, {s(sT2)} offen sc1')
    a(f's_add_u32 {s(sI)}, {s(sI)}, 1')
    a(f's_cmp_lt_u32 {s(sI)}, 0x40000')
    a('s_waitcnt vmcnt(0)')
    a(f's_cbranch_scc1 {L}_fl')
    a.label(f'{L}_flok')
    st(10)
    a(f's_mul_i32 {s(sT0)}, {s(sHG)}, {16*6144}')
    a(f's_mul_i32 {s(sT1)}, {s(sW)}, 1536')
    a(f's_add_u32 {s(sT0)}, {s(sT0)}, {s(sT1)}')
    a(f's_add_u32 {s(sT0)}, {s(sT0)}, {WS_P:#x}')
    PA = 96
    a(f's_mov_b32 {s(sT1)}, {s(sT0)}')
    for r in range(16):
        a(f'buffer_load_dwordx4 {v(PA+6*r,4)}, v2, {s(rWS,4)}, {s(sT1)} offen sc1')
        a(f'buffer_load_dwordx2 {v(PA+6*r+4,2)}, v4, {s(rWS,4)}, {s(sT1)} offen offset:1024 sc1')
        if r < 15: a(f's_add_u32 {s(sT1)}, {s(sT1)}, 6144')
    st(6)
    GA = 60
    for p in range(2):
        a(f'v_mov_b32 {v(GA+2*p)}, 0'); a(f'v_mov_b32 {v(GA+2*p+1)}, 0')
    for j in range(9):
        a(f'v_lshlrev_b32 v30, 16, {v(GWV+j)}')
        a(f'v_and_b32 v31, 0xffff0000, {v(GWV+j)}')
        for p in range(2):
            t = 24 + 40 * p; xr = GX + 9 * p + j
            a(f'v_lshlrev_b32 {v(t)}, 16, {v(xr)}')
            a(f'v_and_b32 {v(t+1)}, 0xffff0000, {v(xr)}')
            a(f'v_pk_mul_f32 {v(t,2)}, {v(t,2)}, v[30:31]')
            a(f'v_cvt_pk_bf16_f32 {v(t+2)}, {v(t)}, {v(t+1)}')
            a(f'v_lshlrev_b32 {v(t)}, 16, {v(t+2)}')
            a(f'v_and_b32 {v(t+1)}, 0xffff0000, {v(t+2)}')
            a(f'v_pk_add_f32 {v(GA+2*p,2)}, {v(GA+2*p,2)}, {v(t,2)}')
    for p in range(2): a(f'v_add_f32 {v(GA+2*p)}, {v(GA+2*p)}, {v(GA+2*p+1)}')
    for sh in (1, 2, 4, 8):
        for p in range(2): a(f'v_add_f32_dpp {v(GA+2*p)}, {v(GA+2*p)}, {v(GA+2*p)} row_ror:{sh} row_mask:0xf bank_mask:0xf')
    for p in range(2): a(f'v_mov_b32 {v(GA+2*p+1)}, {v(GA+2*p)}')
    for p in range(2): a(f'v_permlane16_swap_b32 {v(GA+2*p)}, {v(GA+2*p+1)}')
    for p in range(2): a(f'v_add_f32 {v(GA+2*p)}, {v(GA+2*p)}, {v(GA+2*p+1)}')
    a(f'v_and_b32 v30, 1, {v(vL)}')
    a('v_cmp_eq_u32 vcc, 1, v30')
    a(f'v_cndmask_b32 v6, {v(GA)}, {v(GA+2)}, vcc')
    a('v_cvt_pk_bf16_f32 v6, v6, v6')
    a('v_lshlrev_b32 v6, 16, v6')
    a(f'v_mul_f32 v6, {f32(-math.log2(math.e))}, v6')
    a('v_exp_f32 v6, v6')
    a('v_add_f32 v6, 1.0, v6')
    a('v_rcp_f32 v6, v6')
    a('v_cvt_pk_bf16_f32 v6, v6, v6')
    a('v_lshlrev_b32 v6, 16, v6')
    a(f'v_lshrrev_b32 v7, 5, {v(vL)}')
    a('v_lshl_add_u32 v7, v30, 1, v7')
    a('v_lshlrev_b32 v7, 2, v7')
    a(f's_lshl_b32 {s(sLX)}, {s(sXB)}, 2')
    a(f's_add_u32 {s(sLX)}, {s(sLX)}, {WS_G:#x}')
    a(f's_mov_b32 {s(sI)}, 0')
    st(11)
    for r in range(16):
        d = PA + 6 * r
        a(f's_waitcnt vmcnt({2*(15-r)})')
        a.label(f'{L}_chk{r}')
        a(f'v_bitop3_b32 v16, {v(d)}, {v(d+1)}, {v(d+2)} bitop3:0x80')
        a(f'v_bitop3_b32 v17, {v(d+3)}, {v(d+4)}, {v(d+5)} bitop3:0x80')
        a('v_bitop3_b32 v16, v16, v17, 1 bitop3:0x80')
        a('v_cmp_ne_u32 vcc, 1, v16')
        a(f's_cbranch_vccnz {L}_rty{r}')
        a.label(f'{L}_ok{r}')
        if r:
            for p in range(3): a(f'v_pk_add_f32 {v(PA+2*p,2)}, {v(PA+2*p,2)}, {v(d+2*p,2)}')
        a(f's_add_u32 {s(sT0)}, {s(sT0)}, 6144')
    for p in range(3): a(f'v_cvt_pk_bf16_f32 {v(PA+p)}, {v(PA+2*p)}, {v(PA+2*p+1)}')
    a(f'ds_write_b64 v3, {v(PA,2)} offset:{FRG}')
    a(f'ds_write_b32 {v(vD0)}, {v(PA+2)}')
    a('s_waitcnt lgkmcnt(0)')
    st(12)
    if st.enabled:
        a(f's_add_u32 s96, s70, {s(sI)}'); a('s_addc_u32 s97, s71, 0')
    a('s_barrier')
    a('s_mov_b32 exec_lo, 3')
    a('s_mov_b32 exec_hi, 3')
    a(f'buffer_store_dword v6, v7, {s(rWS,4)}, {s(sLX)} offen')
    a('s_mov_b64 exec, -1')
    st.flush()
    a('s_endpgm')
    for r in range(16):
        d = PA + 6 * r
        a.label(f'{L}_rty{r}')
        a(f'buffer_load_dwordx4 {v(d,4)}, v2, {s(rWS,4)}, {s(sT0)} offen sc1')
        a(f'buffer_load_dwordx2 {v(d+4,2)}, v4, {s(rWS,4)}, {s(sT0)} offen offset:1024 sc1')
        a(f's_add_u32 {s(sI)}, {s(sI)}, 1')
        a(f's_cmp_lt_u32 {s(sI)}, 0x40000')
        a('s_waitcnt vmcnt(0)')
        a(f's_cbranch_scc1 {L}_chk{r}')
        a(f's_branch {L}_ok{r}')

def gen_g_only(a):
    a(f's_cmp_ge_u32 s2, {G_NWG}')
    a('s_cbranch_scc1 g_end')
    gen_g(a)
    a.label('g_end')
    a('s_endpgm')
```

```python
from common import *

S_NWG = 128
U_COPY = 4512
U_CH = 4 * U_COPY
T_ENT = 544
T_WAVE = 15 * T_ENT + 512
LDS_T = 0
LDS_U = 8 * T_WAVE
LDS_K = LDS_U + 4 * U_CH
K_CH = 4224
S_LDS = LDS_K + 5 * K_CH
LDS_U5 = 2 * T_WAVE

def fold3(p): return (p ^ (p >> 3) ^ (p >> 6)) & 7
def nslot(p):
    f = fold3(p)
    if p < 16: return f + 8 * (p >> 3)
    return f + 8 * (1 - (f & 1))

def gen_ssm(a, sid='s3', stamp=None, tail=None):
    L = 'ssm'
    st = stamp if stamp else Stamper(a, enabled=False)
    st.init(); st(0)
    sX, sP, sLD, sWS = 4, 8, 16, 20
    rX, rW, rP0, rWS, rL = 24, 28, 32, 48, 52
    sW, sC, sHF, sCH0, sC5, sT0, sT1, sCH, sB5, sODD = 60, 61, 62, 63, 64, 65, 66, 67, 68, 69
    sM, sXC, sJ, sT2, sT3, sE0, sE1, sUO, sPWB, sPXB, sHLP, sKB, sSEL0, sSEL1, sNH = 4, 6, 7, 8, 9, 10, 11, 12, 13, 14, 15, 16, 17, 18, 19
    a(f's_load_dwordx8 {s(sP,8)}, s[0:1], {KA["lar"]}')
    a(f's_load_dwordx4 {s(sLD,4)}, s[0:1], {KA["ldt"]}')
    a(f's_load_dwordx4 {s(sX,4)}, s[0:1], {KA["x"]}')
    a(f's_load_dwordx4 {s(sWS,4)}, s[0:1], {KA["dbg"]}')
    vL = 1
    a('v_lshrrev_b32 v2, 6, v0')
    a(f'v_and_b32 {v(vL)}, 63, v0')
    a(f'v_readfirstlane_b32 {s(sW)}, v2')
    a(f's_and_b32 {s(sT0)}, {sid}, 7')
    a(f's_mul_i32 {s(sT0)}, {s(sT0)}, 72')
    a(f's_lshr_b32 {s(sT1)}, {sid}, 3')
    a(f's_lshr_b32 {s(sC)}, {s(sT1)}, 1')
    a(f's_mul_i32 {s(sC)}, {s(sC)}, 10')
    a(f's_and_b32 {s(sODD)}, {s(sT1)}, 1')
    a(f's_add_u32 {s(sC5)}, {s(sC)}, {s(sODD)}')
    a(f's_add_u32 {s(sC5)}, {s(sC5)}, {s(sT0)}')
    a(f's_add_u32 {s(sC5)}, {s(sC5)}, 4')
    a(f's_mul_i32 {s(sHF)}, {s(sODD)}, 6')
    a(f's_add_u32 {s(sC)}, {s(sC)}, {s(sHF)}')
    a(f's_lshl2_add_u32 {s(sCH0)}, {s(sT1)}, 8')
    a(f's_cmp_lt_u32 {s(sT1)}, 8')
    a(f's_cselect_b32 {s(sB5)}, 1, 0')
    a(f's_cselect_b32 {s(sCH0)}, {s(sC)}, {s(sCH0)}')
    a(f's_cselect_b32 {s(sODD)}, {s(sODD)}, 0')
    a(f's_add_u32 {s(sCH0)}, {s(sCH0)}, {s(sT0)}')
    a(f's_and_b32 {s(sC)}, {s(sW)}, 3')
    a(f's_lshr_b32 {s(sHF)}, {s(sW)}, 2')
    a(f's_add_u32 {s(sCH)}, {s(sCH0)}, {s(sC)}')
    a(f'v_lshlrev_b32 v2, 1, {v(vL)}')
    a('v_mov_b32 v3, 0')
    a(f's_lshl_b32 {s(sT0)}, {s(sCH)}, 8')
    a(f's_lshl_b32 {s(sT1)}, {s(sCH)}, 1')
    (vN1, vN2, vM1, vM2, vBP, vUA, vKA, vL16, vL8, vUW, vUA0, vUA1, vPX, vPW, vPQ, vDT, vDSK, vSC) = range(4, 22)
    vP5 = 22
    vX0, vX1 = 28, 29
    vUA5, vKA5 = 30, 31
    SB = lambda m: 32 + 40 * m
    a('s_waitcnt lgkmcnt(0)')
    for i in range(4):
        srd(a, rP0 + 4 * i, sP + 2 * i, 576 * 128 * 2)
        for m in range(2):
            a(f'buffer_load_ushort {v(SB(m)+i)}, v2, {s(rP0+4*i,4)}, {s(sT0)} offen offset:{128*m}')
    srd(a, rL, sLD, 1152); srd(a, rL + 4, sLD + 2, 1152)
    a(f'buffer_load_ushort {v(vDT)}, v3, {s(rL,4)}, {s(sT1)} offen')
    a(f'buffer_load_ushort {v(vDSK)}, v3, {s(rL+4,4)}, {s(sT1)} offen')
    srd(a, rX, sX, XB); srd(a, rW, sX + 2, WB); srd(a, rWS, sWS + 2, WS_SIZE)
    a(f's_lshr_b32 {s(sT2)}, {s(sW)}, 1')
    a(f's_xor_b32 {s(sT2)}, {s(sT2)}, {s(sHF)}')
    a(f's_andn2_b32 {s(sHLP)}, {s(sB5)}, {s(sT2)}')
    a(f's_and_b32 {s(sNH)}, {s(sB5)}, {s(sT2)}')
    a(f's_cmp_eq_u32 {s(sHLP)}, 0')
    a(f's_cbranch_scc1 {L}_no5p')
    a(f's_and_b32 {s(sT2)}, {s(sW)}, 1')
    a(f's_lshl_b32 {s(sT2)}, {s(sT2)}, 7')
    a(f's_lshl_b32 {s(sT0)}, {s(sC5)}, 8')
    a(f's_add_u32 {s(sT0)}, {s(sT0)}, {s(sT2)}')
    a(f's_lshl_b32 {s(sT1)}, {s(sC5)}, 1')
    for i in range(4):
        a(f'buffer_load_ushort {v(vP5+i)}, v2, {s(rP0+4*i,4)}, {s(sT0)} offen')
    a(f'buffer_load_ushort {v(vP5+4)}, v3, {s(rL,4)}, {s(sT1)} offen')
    a(f'buffer_load_ushort {v(vP5+5)}, v3, {s(rL+4,4)}, {s(sT1)} offen')
    a.label(f'{L}_no5p')
    st(1)
    vZ = 112
    for i in range(4): a(f'v_mov_b32 {v(vZ+i)}, 0')
    a('v_lshrrev_b32 v2, 5, v0')
    a('v_and_b32 v3, 31, v0')
    a(f'v_mul_u32_u24 v2, {U_COPY}, v2')
    a('v_lshl_add_u32 v2, v3, 4, v2')
    a(f'v_add_u32 v2, {LDS_U}, v2')
    a(f's_mov_b32 exec_lo, 0x3ffffff')
    a(f's_mov_b32 exec_hi, 0x3ffffff')
    a(f'ds_write_b128 v2, {v(vZ,4)} offset:{16 + 255*16}')
    a('s_mov_b32 exec_lo, -1')
    a(f's_cmp_lg_u32 {s(sW)}, 2')
    a(f's_cbranch_scc1 {L}_z2')
    a('s_mov_b32 exec_hi, 0xff')
    a(f'v_lshrrev_b32 v2, 3, {v(vL)}')
    a(f'v_and_b32 v3, 7, {v(vL)}')
    a(f'v_mul_u32_u24 v2, {K_CH}, v2')
    a('v_lshl_add_u32 v2, v3, 4, v2')
    a(f'v_add_u32 v2, {LDS_K}, v2')
    a(f'ds_write_b128 v2, {v(vZ,4)}')
    a.label(f'{L}_z2')
    a('s_mov_b64 exec, -1')
    vD = 255
    a(f's_and_b32 {s(sXC)}, {sid}, 7')
    a(f's_lshr_b32 {s(sJ)}, {sid}, 3')
    a(f'v_mul_u32_u24 v2, 103, {v(vL)}')
    a('v_lshrrev_b32 v2, 9, v2')
    a('v_mul_u32_u24 v3, 5, v2')
    a(f'v_sub_u32 v3, {v(vL)}, v3')
    a('v_lshlrev_b32 v3, 7, v3')
    a(f'v_mul_u32_u24 {v(vPQ)}, 3456, v2')
    a(f'v_add_u32 {v(vPQ)}, {v(vPQ)}, v3')
    a(f'v_lshrrev_b32 {v(vPW)}, 1, v2')
    a(f'v_add_u32 {v(vPW)}, {v(vPW)}, v2')
    a(f'v_mul_u32_u24 {v(vPW)}, 1152, {v(vPW)}')
    a(f'v_add_u32 {v(vPW)}, {v(vPW)}, v3')
    a(f'v_lshrrev_b32 v2, 1, {v(vL)}')
    a('v_mul_u32_u24 v2, 1152, v2')
    a(f'v_and_b32 v3, 1, {v(vL)}')
    a(f'v_lshl_add_u32 {v(vPX)}, v3, 7, v2')
    a(f's_and_b32 {s(sT3)}, {s(sXC)}, 1')
    a(f's_mul_i32 {s(sT3)}, {s(sT3)}, 576')
    a(f's_mul_i32 {s(sPWB)}, {s(sJ)}, {4*3456}')
    a(f's_add_u32 {s(sPWB)}, {s(sPWB)}, {s(sT3)}')
    a(f's_lshr_b32 {s(sT0)}, {s(sXC)}, 1')
    a(f's_lshl4_add_u32 {s(sT0)}, {s(sT0)}, {s(sJ)}')
    a(f's_mul_i32 {s(sPXB)}, {s(sT0)}, {32*1152}')
    def pf_x(kreg):
        a(f's_lshl_b32 {s(sT0)}, {s(kreg)}, 8')
        a(f's_min_u32 {s(sT0)}, {s(sT0)}, 896')
        a(f's_add_u32 {s(sT0)}, {s(sT0)}, {s(sPXB)}')
        a(f'buffer_load_dword {v(vD)}, {v(vPX)}, {s(rX,4)}, {s(sT0)} offen')
    def pf_w(sreg):
        a(f's_mul_i32 {s(sT0)}, {s(sreg)}, {64*3456}')
        a(f's_add_u32 {s(sT0)}, {s(sT0)}, {s(sPWB)}')
        a('s_mov_b32 exec_hi, 0xff')
        a(f'buffer_load_dword {v(vD)}, {v(vPW)}, {s(rW,4)}, {s(sT0)} offen offset:1152')
        a('s_mov_b64 exec, -1')
    a('s_waitcnt lgkmcnt(0)')
    a('s_barrier')
    a(f's_cmp_gt_u32 {s(sW)}, 4')
    a(f's_cbranch_scc1 {L}_p1w')
    a(f's_cmp_eq_u32 {s(sW)}, 4')
    a(f's_cbranch_scc1 {L}_p1x')
    a(f's_lshr_b32 {s(sT1)}, {s(sW)}, 1')
    a(f's_lshl1_add_u32 {s(sT0)}, {s(sJ)}, {s(sT1)}')
    a(f's_mul_i32 {s(sT0)}, {s(sT0)}, {64*1152}')
    a(f's_mul_i32 {s(sT1)}, {s(sXC)}, 144')
    a(f's_add_u32 {s(sT0)}, {s(sT0)}, {s(sT1)}')
    a(f's_and_b32 {s(sT1)}, {s(sW)}, 1')
    a(f's_mul_i32 {s(sT1)}, {s(sT1)}, 140')
    a(f's_add_u32 {s(sT0)}, {s(sT0)}, {s(sT1)}')
    a(f'v_mul_u32_u24 v2, 1152, {v(vL)}')
    a(f'buffer_load_dword {v(vD)}, v2, {s(rX,4)}, {s(sT0)} offen')
    a(f's_branch {L}_p1e')
    a.label(f'{L}_p1x')
    a(f's_mov_b32 {s(sT1)}, 1')
    pf_x(sT1)
    a(f's_branch {L}_p1e')
    a.label(f'{L}_p1w')
    a(f's_sub_u32 {s(sT1)}, {s(sW)}, 3')
    pf_w(sT1)
    a.label(f'{L}_p1e')
    vI, vGq = 112, 113
    a(f'v_and_b32 {v(vI)}, 15, {v(vL)}')
    a(f'v_lshrrev_b32 {v(vGq)}, 4, {v(vL)}')
    a(f'v_lshlrev_b32 {v(vL16)}, 4, {v(vL)}')
    a(f'v_lshlrev_b32 {v(vL8)}, 3, {v(vL)}')
    a(f's_mul_i32 {s(sT0)}, {s(sW)}, {T_WAVE}')
    a(f's_mov_b32 m0, {s(sT0)}')
    a(f'v_lshl_add_u32 v2, {v(vGq)}, 4, {s(sT0)}')
    a(f'v_lshrrev_b32 {v(vX0)}, 3, {v(vI)}')
    a(f'v_xor_b32 v3, {v(vX0)}, {v(vI)}')
    a(f'v_mul_u32_u24 v3, {T_ENT}, v3')
    a(f'v_add_u32 {v(vN1)}, v2, v3')
    a(f'v_lshlrev_b32 v3, 1, {v(vI)}')
    a(f'v_lshrrev_b32 {v(vX1)}, 2, {v(vI)}')
    a(f'v_xor_b32 v3, v3, {v(vX1)}')
    a('v_and_b32 v3, 7, v3')
    a(f'v_xor_b32 {v(vX1)}, v3, {v(vX0)}')
    a(f'v_and_b32 {v(vX1)}, 1, {v(vX1)}')
    a(f'v_lshl_add_u32 v3, {v(vX1)}, 3, v3')
    a(f'v_mul_u32_u24 v3, {T_ENT}, v3')
    a(f'v_add_u32 {v(vN2)}, v2, v3')
    a(f'v_mul_u32_u24 v3, {T_ENT}, {v(vI)}')
    a(f'v_add_u32 {v(vM1)}, v2, v3')
    a(f'v_max_u32 v3, 8, {v(vI)}')
    a('v_subrev_u32 v3, 8, v3')
    a(f'v_cmp_gt_u32 vcc, 4, {v(vI)}')
    a('v_cndmask_b32 v3, v3, 8, vcc')
    a(f'v_mul_u32_u24 v3, {T_ENT}, v3')
    a(f'v_add_u32 {v(vM2)}, v2, v3')
    a(f'v_add_u32 v3, 1, {v(vL)}')
    a('v_and_b32 v3, 63, v3')
    a(f'v_lshlrev_b32 {v(vBP)}, 2, v3')
    a(f'v_and_b32 v3, 3, {v(vI)}')
    a(f'v_mul_u32_u24 v3, {U_COPY}, v3')
    a(f'v_lshl_add_u32 v3, {v(vGq)}, 4, v3')
    a(f'v_lshrrev_b32 {v(vX1)}, 2, {v(vI)}')
    a(f'v_lshlrev_b32 {v(vX1)}, 7, {v(vX1)}')
    a(f'v_sub_u32 v3, v3, {v(vX1)}')
    a(f's_mul_i32 {s(sT0)}, {s(sC)}, {U_CH}')
    a(f's_lshl_b32 {s(sT1)}, {s(sHF)}, 8')
    a(f's_sub_u32 {s(sT0)}, {s(sT0)}, {s(sT1)}')
    a(f's_add_u32 {s(sT0)}, {s(sT0)}, {LDS_U + 16*277 - 64*63}')
    a(f'v_add_u32 {v(vUA)}, {s(sT0)}, v3')
    a(f's_lshl_b32 {s(sT2)}, {s(sW)}, 7')
    a(f's_sub_u32 {s(sT0)}, {LDS_U5 + 16*277 - 64*63 + 384}, {s(sT2)}')
    a(f'v_add_u32 {v(vUA5)}, {s(sT0)}, v3')
    a(f's_mul_i32 {s(sKB)}, {s(sC)}, {K_CH}')
    a(f's_add_u32 {s(sKB)}, {s(sKB)}, {LDS_K + 128}')
    a(f's_sub_u32 {s(sT0)}, {s(sKB)}, {s(sT1)}')
    a(f's_add_u32 {s(sT0)}, {s(sT0)}, {328 - 192}')
    a(f'v_lshlrev_b32 v3, 3, {v(vI)}')
    a(f'v_lshl_add_u32 v3, {v(vGq)}, 4, v3')
    a(f'v_add_u32 {v(vKA)}, {s(sT0)}, v3')
    a(f's_sub_u32 {s(sT0)}, {LDS_K + 4*K_CH + 128 + 328 - 192 + 384}, {s(sT2)}')
    a(f'v_add_u32 {v(vKA5)}, {s(sT0)}, v3')
    a(f's_lshl_b32 {s(sT1)}, {s(sHF)}, 24')
    a(f's_add_u32 {s(sE0)}, {s(sT1)}, {LOG2E}')
    a(f's_add_u32 {s(sE1)}, {s(sT1)}, {f32(1/(2*math.pi))}')
    UR = lambda r: (SB(0) + 4 + 4 * r) if r < 3 else (SB(1) + 4 + 4 * (r - 3))
    a(f's_mov_b32 {s(sT0)}, {4*1152}')
    a(f'v_mul_lo_u32 {v(vUA0)}, {s(sT0)}, v0')
    a(f'v_add_u32 {v(vUA1)}, {4*1152}, {v(vUA0)}')
    a(f's_lshl_b32 {s(sUO)}, {s(sCH0)}, 1')
    a(f's_lshl_b32 {s(sT0)}, {s(sODD)}, 2')
    a(f's_sub_u32 {s(sUO)}, {s(sUO)}, {s(sT0)}')
    a(f's_mov_b32 {s(sM)}, 0x80008000')
    a(f's_mov_b32 {s(sM+1)}, 0x80008000')
    a(f'v_lshlrev_b32 {v(vUW)}, 3, v0')
    a(f'v_sub_u32 {v(vUW)}, {LDS_U + 16 + 2*2040}, {v(vUW)}')
    a(f's_mov_b32 {s(sSEL0)}, 0x05040100')
    a(f's_mov_b32 {s(sSEL1)}, 0x07060302')
    def uload(r):
        if r < 4: a(f'buffer_load_dwordx3 {v(UR(r),3)}, {v(vUA0)}, {s(rX,4)}, {s(sUO)} offen offset:{1152*r}')
        else:
            a(f's_mov_b64 exec, {s(sM,2)}')
            a(f'buffer_load_dwordx3 {v(UR(r),3)}, {v(vUA1)}, {s(rX,4)}, {s(sUO)} offen')
            a('s_mov_b64 exec, -1')
    a('s_waitcnt vmcnt(1)')
    st(2)
    a(f's_add_u32 {s(sT1)}, {s(sW)}, 2')
    a(f's_cmp_gt_u32 {s(sW)}, 2')
    a(f's_cbranch_scc1 {L}_p2w')
    pf_x(sT1)
    a(f's_branch {L}_p2e')
    a.label(f'{L}_p2w')
    a(f's_cmp_eq_u32 {s(sW)}, 7')
    a(f's_cbranch_scc1 {L}_p2e')
    pf_w(sT1)
    a.label(f'{L}_p2e')

    tmp = [112, 114, 116, 118]
    res = [120, 122, 124, 126]
    vH = 128; vACC = 136
    vFM1, vFM2, vFN = 144, 176, 208
    names = dict(al=0, th=1, C=2, E1=4, E2=6, E3=8, E6=10, E128=12, E256=14, G1=16, G2=18, G3=20, H2=22, H3=24, H4=26,
                 E4=28, E8=30, E32=32, E64=34, c1=16, c2=18, c3=20, c4=22)
    hrot = [0]
    def ktask(NM, tag, with_u):
        MS = range(NM)
        R = lambda n, m: SB(m) + names[n]
        def cm(items):
            allp = [((R(d, m) if isinstance(d, str) else d), R(x, m), R(y, m)) for (d, x, y) in items for m in MS]
            for j in range(0, len(allp), 4):
                grp = allp[j:j+4]
                for k, (d, x, y) in enumerate(grp):
                    a(f'v_pk_mul_f32 {v(tmp[k],2)}, {v(x,2)}, {v(y,2)} op_sel:[0,0] op_sel_hi:[0,1]')
                for k, (d, x, y) in enumerate(grp):
                    a(f'v_pk_fma_f32 {v(d,2)}, {v(x,2)}, {v(y,2)}, {v(tmp[k],2)} op_sel:[1,1,0] op_sel_hi:[1,0,1] neg_lo:[0,1,0]')
        def putr(regs, neg):
            hs = []
            for x, slot, m in regs:
                h = vH + hrot[0]; hrot[0] = (hrot[0] + 1) % 8; hs.append(h)
                a(f'v_cvt_pk_f16_f32 {v(h)}, {v(x)}, {"-" if neg else ""}{v(x+1)}')
            for (x, slot, m), h in zip(regs, hs):
                a(f'ds_write_addtid_b32 {v(h)} offset:{slot*T_ENT + 256*m}')
        def put(items, neg=False):
            putr([(R(n, m), slot, m) for n, slot in items for m in MS], neg)
        def leaves(items):
            allp = [(R(x, m), R(y, m), slot, m) for (x, y, slot) in items for m in MS]
            for j in range(0, len(allp), 4):
                grp = allp[j:j+4]
                for k, (x, y, slot, m) in enumerate(grp):
                    a(f'v_pk_mul_f32 {v(tmp[k],2)}, {v(x,2)}, {v(y,2)} op_sel:[0,0] op_sel_hi:[0,1]')
                for k, (x, y, slot, m) in enumerate(grp):
                    a(f'v_pk_fma_f32 {v(res[k],2)}, {v(x,2)}, {v(y,2)}, {v(tmp[k],2)} op_sel:[1,1,0] op_sel_hi:[1,0,1] neg_lo:[0,1,0]')
                putr([(res[k], slot, m) for k, (x, y, slot, m) in enumerate(grp)], True)
        NQ = 4 * NM
        def reads(dst, reg):
            for q in range(NQ): a(f'ds_read_b128 {v(dst+4*q,4)}, {v(reg)} offset:{64*q}')
        X0, X1 = vX0, vX1
        for m in MS:
            for i in range(4): a(f'v_lshlrev_b32 {v(SB(m)+i)}, 16, {v(SB(m)+i)}')
        a(f'v_lshlrev_b32 {v(vDT)}, 16, {v(vDT)}')
        a(f'v_lshlrev_b32 {v(vDSK)}, 16, {v(vDSK)}')
        a(f'v_mul_f32 {v(vDT)}, {LOG2E}, {v(vDT)}')
        for m in MS: a(f'v_mul_f32 {v(SB(m))}, {LOG2E}, {v(SB(m))}')
        a(f'v_max_f32 {v(X0)}, abs({v(SB(0)+2)}), abs({v(SB(0)+3)})')
        a(f'v_exp_f32 {v(vDT)}, {v(vDT)}')
        if NM > 1: a(f'v_max3_f32 {v(X0)}, abs({v(SB(1)+2)}), abs({v(SB(1)+3)}), {v(X0)}')
        for m in MS: a(f'v_exp_f32 {v(SB(m))}, {v(SB(m))}')
        dpp = lambda sh: a(f'v_max_f32_dpp {v(X0)}, {v(X0)}, {v(X0)} row_ror:{sh} row_mask:0xf bank_mask:0xf')
        dpp(1)
        a(f'v_cvt_pk_bf16_f32 {v(vDT)}, {v(vDT)}, {v(SB(0))}')
        if NM > 1: a(f'v_cvt_pk_bf16_f32 {v(SB(1))}, {v(SB(1))}, {v(SB(1))}')
        dpp(2)
        a(f'v_and_b32 {v(SB(0))}, 0xffff0000, {v(vDT)}')
        a(f'v_lshlrev_b32 {v(vDT)}, 16, {v(vDT)}')
        if NM > 1: a(f'v_and_b32 {v(SB(1))}, 0xffff0000, {v(SB(1))}')
        dpp(4)
        for m in MS:
            a(f'v_mul_f32 {v(SB(m))}, {v(SB(m))}, {v(vDT)}')
            a(f'v_mul_f32 {v(SB(m)+1)}, {v(SB(m)+1)}, {v(vDT)}')
        dpp(8)
        for m in MS:
            a(f'v_mul_f32 {v(SB(m))}, {s(sE0)}, -{v(SB(m))}')
            a(f'v_mul_f32 {v(SB(m)+1)}, {s(sE1)}, {v(SB(m)+1)}')
        a(f'v_mov_b32 {v(X1)}, {v(X0)}')
        T1 = lambda m: tmp[2*m]; T2 = lambda m: tmp[2*m+1]
        for m in MS:
            a(f'v_mul_f32 {v(T2(m))}, {f32(32)}, {v(R("al",m))}')
            a(f'v_mul_f32 {v(T2(m)+1)}, {f32(32)}, {v(R("th",m))}')
        a(f'v_permlane16_swap_b32 {v(X0)}, {v(X1)}')
        for m in MS:
            a(f'v_fract_f32 {v(T1(m)+1)}, {v(R("th",m))}')
            a(f'v_fract_f32 {v(T2(m)+1)}, {v(T2(m)+1)}')
        a(f'v_max_f32 {v(X0)}, {v(X0)}, {v(X1)}')
        for m in MS: a(f'v_exp_f32 {v(T1(m))}, {v(R("al",m))}')
        a(f'v_mov_b32 {v(X1)}, {v(X0)}')
        for m in MS: a(f'v_exp_f32 {v(T2(m))}, {v(T2(m))}')
        for m in MS: a(f'v_cos_f32 {v(R("E32",m))}, {v(T2(m)+1)}')
        a(f'v_permlane32_swap_b32 {v(X0)}, {v(X1)}')
        for m in MS: a(f'v_sin_f32 {v(R("E32",m)+1)}, {v(T2(m)+1)}')
        a(f'v_max_f32 {v(X0)}, {v(X0)}, {v(X1)}')
        for m in MS: a(f'v_cos_f32 {v(R("E1",m))}, {v(T1(m)+1)}')
        a(f'v_frexp_exp_i32_f32 {v(X0)}, {v(X0)}')
        for m in MS: a(f'v_sin_f32 {v(R("E1",m)+1)}, {v(T1(m)+1)}')
        a(f'v_sub_u32 {v(X1)}, 0, {v(X0)}')
        a(f'v_add_u32 {v(X0)}, 1, {v(X0)}')
        for m in MS: a(f'v_pk_mul_f32 {v(R("E32",m),2)}, {v(R("E32",m),2)}, {v(T2(m),2)} op_sel:[0,0] op_sel_hi:[1,0]')
        for m in MS: a(f'v_pk_mul_f32 {v(R("E1",m),2)}, {v(R("E1",m),2)}, {v(T1(m),2)} op_sel:[0,0] op_sel_hi:[1,0]')
        for m in MS:
            a(f'v_ldexp_f32 {v(R("C",m))}, {v(R("C",m))}, {v(X1)}')
            a(f'v_ldexp_f32 {v(R("C",m)+1)}, {v(R("C",m)+1)}, {v(X1)}')
        a(f'v_ldexp_f32 {v(vSC)}, {v(vDT)}, {v(X0)}')
        cm([('E64', 'E32', 'E32'), ('E2', 'E1', 'E1')])
        cm([('E128', 'E64', 'E64'), ('E3', 'E2', 'E1'), ('E4', 'E2', 'E2')])
        cm([('G2', 'C', 'E128'), ('E256', 'E128', 'E128'), ('E6', 'E3', 'E3'), ('E8', 'E4', 'E4')])
        cm([('G3', 'G2', 'E64'), ('H2', 'C', 'E256')])
        put([('G2', 8), ('G3', 12)], True)
        leaves([(g, e, b + r) for g, b in (('G2', 8), ('G3', 12)) for r, e in ((1, 'E1'), (2, 'E2'), (3, 'E3'))])
        a(f's_cmp_eq_u32 {s(sHF)}, 0')
        a(f's_cbranch_scc1 {L}_ka{tag}')
        put([('H2', 0)], True)
        a(f's_branch {L}_kb{tag}')
        a.label(f'{L}_ka{tag}')
        cm([('G1', 'C', 'E64')])
        leaves([('C', e, r) for r, e in ((1, 'E1'), (2, 'E2'), (3, 'E3'))])
        put([('C', 0), ('G1', 4)], True)
        leaves([('G1', e, 4 + r) for r, e in ((1, 'E1'), (2, 'E2'), (3, 'E3'))])
        a.label(f'{L}_kb{tag}')
        reads(vFM1, vM1)
        cm([('H3', 'H2', 'E128')])
        leaves([('H2', e, r) for r, e in ((1, 'E2'), (2, 'E4'), (3, 'E6'))])
        put([('H2', 0), ('H3', 4)], True)
        leaves([('H3', e, 4 + r) for r, e in ((1, 'E2'), (2, 'E4'), (3, 'E6'), (4, 'E128'))])
        reads(vFM2, vM2)
        a(f'v_mov_b32 {v(X0)}, 0x3c00')
        for m in MS: a(f'ds_write_addtid_b32 {v(X0)} offset:{nslot(0)*T_ENT + 256*m}')
        put([('E4', nslot(1)), ('E8', nslot(2)), ('E32', nslot(8))])
        for k in range(7):
            it = [('c2', 'E32' if k == 0 else 'c2', 'E4')]
            if k < 5: it.append(('c1', 'E8' if k == 0 else 'c1', 'E4'))
            if k == 5: it.append(('c4', 'E64', 'E32'))
            cm(it)
            if with_u and k in (0, 2, 4, 6): uload(k // 2)
            put([('c2', nslot(9 + k))] + ([('c1', nslot(3 + k))] if k < 5 else []))
        reads(vFN, vN1)
        if with_u: uload(4)
        put([('E64', nslot(16)), ('c4', nslot(24))])
        nw = 2 * NM
        for k in range(3):
            cm([('c3', 'E64' if k == 0 else 'c3', 'E8'), ('c4', 'c4', 'E8')])
            if k == 0:
                a(f's_waitcnt lgkmcnt({nw})')
                for q in range(NQ):
                    a(f'v_mfma_f32_16x16x32_f16 {v(vACC,4)}, {v(vFM1+4*q,4)}, {v(vFN+4*q,4)}, {v(vACC,4) if q else 0}')
            put([('c3', nslot(18 + 2 * k)), ('c4', nslot(26 + 2 * k))])
        reads(vFN, vN2)
        for i in range(4): a(f'v_mul_f32 {v(vACC+i)}, {v(vSC)}, {v(vACC+i)}')
        for q in range(NQ):
            a(f's_waitcnt lgkmcnt({NQ-1-q})')
            a(f'v_mfma_f32_16x16x32_f16 {v(vACC+4,4)}, {v(vFM2+4*q,4)}, {v(vFN+4*q,4)}, {v(vACC+4,4) if q else 0}')
        for i in range(4, 8): a(f'v_mul_f32 {v(vACC+i)}, {v(vSC)}, {v(vACC+i)}')
    vNB1, vNB2, vE = 112, 113, 144
    PAT = {1: [(0,0),(1,2),(2,2),(3,4)], 2: [(0,0),(0,1),(1,1),(2,2),(2,2),(2,3),(3,3),(4,4)],
           3: [(0,0),(0,0),(0,1),(1,1),(1,1),(1,1),(2,2),(2,2),(2,2),(2,2),(2,3),(3,3),(3,3),(3,3),(4,4),(4,4)]}
    def expand(e, ac, nb, kb, ereg):
        val = lambda i: v(ac + i) if i < 4 else v(nb)
        a(f'v_lshl_add_u32 v2, {v(vL)}, {3+e}, {kb}')
        for d, (i, j) in enumerate(PAT[e]):
            a(f'v_cvt_pk_bf16_f32 {v(ereg+d)}, {val(i)}, {val(j)}')
            if d % 4 == 3: a(f'ds_write_b128 v2, {v(ereg+d-3,4)} offset:{4*(d-3)}')
    def seg0(ac, kb):
        a(f'v_cmp_eq_u32 vcc, 0, {v(vL)}')
        a(f'v_cndmask_b32 v2, 0, {v(vDSK)}, vcc')
        a(f'v_add_f32 {v(ac)}, {v(ac)}, v2')
        a(f'v_add_u32 v2, {kb}, {v(vL8)}')
        a(f'v_cvt_pk_bf16_f32 {v(vE+24)}, {v(ac)}, {v(ac+1)}')
        a(f'v_cvt_pk_bf16_f32 {v(vE+25)}, {v(ac+2)}, {v(ac+3)}')
        a(f'ds_write_b64 v2, {v(vE+24,2)}')
    ktask(2, 'm', True)
    st(3)
    a(f'ds_bpermute_b32 {v(vNB1)}, {v(vBP)}, {v(vACC)}')
    a(f'ds_bpermute_b32 {v(vNB2)}, {v(vBP)}, {v(vACC+4)}')
    a(f's_cmp_eq_u32 {s(sHF)}, 1')
    a(f's_cbranch_scc1 {L}_exp1')
    seg0(vACC, s(sKB))
    a('s_mov_b32 exec_lo, 0')
    a('s_waitcnt lgkmcnt(1)')
    expand(1, vACC + 4, vNB2, s(sKB), vE)
    a(f's_branch {L}_expd')
    a.label(f'{L}_exp1')
    a('s_mov_b32 exec_lo, 0')
    a('s_waitcnt lgkmcnt(0)')
    expand(2, vACC, vNB1, s(sKB), vE)
    expand(3, vACC + 4, vNB2, s(sKB), vE + 8)
    a.label(f'{L}_expd')
    a('s_mov_b64 exec, -1')
    st(4)
    a('s_waitcnt vmcnt(0)')
    st(5)
    for i in range(3):
        a(f'v_mov_b32_dpp {v(UR(4)+i)}, {v(UR(0)+i)} row_shl:1 row_mask:0xf bank_mask:0xf')
    a(f's_cmp_eq_u32 {s(sODD)}, 0')
    a(f's_cbranch_scc1 {L}_nrot')
    for r in range(5):
        a(f'v_lshrrev_b32 {v(UR(r)+3)}, 16, {v(UR(r))}')
        a(f'v_mov_b32 {v(UR(r))}, {v(UR(r)+1)}')
        a(f'v_mov_b32 {v(UR(r)+1)}, {v(UR(r)+2)}')
        a(f'v_mov_b32 {v(UR(r)+2)}, {v(UR(r)+3)}')
    a.label(f'{L}_nrot')
    vW = 176
    def uperm(c):
        Rr = lambda r: v(UR(r) + (c >> 1)); sel = s(sSEL0) if c % 2 == 0 else s(sSEL1); w = vW + 4 * c
        a(f'v_perm_b32 {v(w)}, {Rr(3)}, {Rr(4)}, {sel}')
        a(f'v_perm_b32 {v(w+1)}, {Rr(1)}, {Rr(2)}, {sel}')
        a(f'v_perm_b32 {v(w+2)}, {Rr(2)}, {Rr(3)}, {sel}')
        a(f'v_perm_b32 {v(w+3)}, {Rr(0)}, {Rr(1)}, {sel}')
    def uwrite(c):
        w = vW + 4 * c
        off = c * U_CH if c < 4 else LDS_U5 - LDS_U
        add = lambda d, o: a(f'v_add_u32 {v(d)}, {o}, {v(vUW)}') if o >= 0 else a(f'v_subrev_u32 {v(d)}, {-o}, {v(vUW)}')
        add(2, off); add(3, off + U_COPY); add(vX0, off + 2 * U_COPY)
        a(f'ds_write_b64 v2, {v(w,2)}')
        a(f'ds_write_b64 v2, {v(w+2,2)} offset:{3*U_COPY + 8}')
        a(f'ds_write2_b32 v3, {v(w+2)}, {v(w+3)} offset0:1 offset1:2')
        a(f'ds_write2_b32 {v(vX0)}, {v(w)}, {v(w+1)} offset0:1 offset1:2')
    def u0write(cs):
        a('s_mov_b64 exec, 1')
        for c in cs:
            off = LDS_U + c * U_CH if c < 4 else LDS_U5
            a(f'v_mov_b32 v2, {off + 16 + 2*2044}')
            a(f'ds_write_b16_d16_hi v2, {v(vW+4*c+3)}')
            a(f'ds_write_b16_d16_hi v2, {v(vW+4*c+3)} offset:{2*U_COPY + 4}')
        a('s_mov_b64 exec, -1')
    for c in range(4):
        uperm(c); uwrite(c)
    uperm(4)
    a(f's_cmp_lg_u32 {s(sW)}, 0')
    a(f's_cbranch_scc1 {L}_nou0')
    u0write(range(4))
    a.label(f'{L}_nou0')
    a(f's_sub_u32 {s(sT1)}, {s(sW)}, 3')
    a(f's_cmp_gt_u32 {s(sT1)}, 2')
    a(f's_cbranch_scc1 {L}_noq')
    a(f's_mul_i32 {s(sT0)}, {s(sJ)}, 3')
    a(f's_add_u32 {s(sT0)}, {s(sT0)}, {s(sT1)}')
    a(f's_mul_i32 {s(sT0)}, {s(sT0)}, {12*3456}')
    a(f's_add_u32 {s(sT0)}, {s(sT0)}, {s(sT3)}')
    a('s_mov_b32 exec_hi, 0xfffffff')
    a(f'buffer_load_dword {v(vD)}, {v(vPQ)}, {s(rW,4)}, {s(sT0)} offen')
    a('s_mov_b64 exec, -1')
    a.label(f'{L}_noq')
    a('s_waitcnt lgkmcnt(0)')
    a('s_barrier')
    st(6)
    a(f's_cmp_eq_u32 {s(sB5)}, 0')
    a(f's_cbranch_scc1 {L}_conv')
    a(f's_cmp_lg_u32 {s(sW)}, 0')
    a(f's_cbranch_scc1 {L}_u5')
    for i in range(4): a(f'v_mov_b32 {v(vZ+i)}, 0')
    a(f'v_lshrrev_b32 v2, 5, {v(vL)}')
    a(f'v_and_b32 v3, 31, {v(vL)}')
    a(f'v_mul_u32_u24 v2, {U_COPY}, v2')
    a('v_lshl_add_u32 v2, v3, 4, v2')
    a(f's_mov_b32 exec_lo, 0x3ffffff')
    a(f's_mov_b32 exec_hi, 0x3ffffff')
    a(f'ds_write_b128 v2, {v(vZ,4)} offset:{LDS_U5 + 16 + 255*16}')
    a(f'ds_write_b128 v2, {v(vZ,4)} offset:{LDS_U5 + 16 + 255*16 + 2*U_COPY}')
    u0write([4])
    a.label(f'{L}_u5')
    uwrite(4)
    a(f's_cmp_eq_u32 {s(sHLP)}, 0')
    a(f's_cbranch_scc1 {L}_conv')
    a('s_setprio 2')
    for i in range(4): a(f'v_mov_b32 {v(SB(0)+i)}, {v(vP5+i)}')
    a(f'v_mov_b32 {v(vDT)}, {v(vP5+4)}')
    a(f'v_mov_b32 {v(vDSK)}, {v(vP5+5)}')
    ktask(1, 'f', False)
    a(f's_mul_i32 {s(sT0)}, {s(sW)}, {T_WAVE}')
    a(f's_xor_b32 {s(sT1)}, {s(sW)}, 1')
    a(f's_mul_i32 {s(sT1)}, {s(sT1)}, {T_WAVE}')
    a(f'v_add_u32 v2, {s(sT0)}, {v(vL16)}')
    a(f'v_add_u32 v3, {s(sT1)}, {v(vL16)}')
    a(f's_bitcmp1_b32 {s(sW)}, 0')
    a(f's_cbranch_scc1 {L}_k2')
    a(f'ds_write_b128 v2, {v(vACC+4,4)}')
    a(f's_branch {L}_k3')
    a.label(f'{L}_k2')
    a(f'ds_write_b128 v2, {v(vACC,4)}')
    a(f'v_mov_b64 {v(vACC,2)}, {v(vACC+4,2)}')
    a(f'v_mov_b64 {v(vACC+2,2)}, {v(vACC+6,2)}')
    a.label(f'{L}_k3')
    a('s_waitcnt lgkmcnt(0)')
    a('s_barrier')
    a(f'ds_read_b128 {v(vACC+4,4)}, v3')
    a(f's_mov_b32 {s(sT2)}, {LDS_K + 4*K_CH + 128}')
    a('s_waitcnt lgkmcnt(0)')
    for p_ in range(2): a(f'v_pk_add_f32 {v(vACC+2*p_,2)}, {v(vACC+2*p_,2)}, {v(vACC+4+2*p_,2)}')
    a(f's_cmp_eq_u32 {s(sW)}, 0')
    a(f's_cbranch_scc1 {L}_x0')
    a(f'ds_bpermute_b32 {v(vNB1)}, {v(vBP)}, {v(vACC)}')
    a('s_mov_b32 exec_lo, 0')
    a('s_waitcnt lgkmcnt(0)')
    a(f's_cmp_eq_u32 {s(sW)}, 6')
    a(f's_cbranch_scc1 {L}_x2')
    a(f's_cmp_eq_u32 {s(sW)}, 7')
    a(f's_cbranch_scc1 {L}_x3')
    expand(1, vACC, vNB1, s(sT2), vE)
    a(f's_branch {L}_xe')
    a.label(f'{L}_x2')
    expand(2, vACC, vNB1, s(sT2), vE)
    a(f's_branch {L}_xe')
    a.label(f'{L}_x3')
    expand(3, vACC, vNB1, s(sT2), vE)
    a(f's_branch {L}_xe')
    a.label(f'{L}_x0')
    seg0(vACC, s(sT2))
    a.label(f'{L}_xe')
    a('s_mov_b64 exec, -1')
    a('s_waitcnt lgkmcnt(0)')
    a('s_barrier')
    a('s_setprio 0')
    st(7)
    a.label(f'{L}_conv')
    vAC, vAC5 = 32, 64
    vF = [112, 176]
    def loads(i, ua, ka):
        f = vF[i & 1]
        ins = []
        for k in range(8):
            ins.append(f'ds_read_b128 {v(f+4*k,4)}, {v(ua)} offset:{64*(63 - 8*k - i)}')
            ins.append(f'ds_read_b64 {v(f+32+4*k,2)}, {v(ka)} offset:{512*k + 64*(3-i)}')
            ins.append(f'ds_read_b64 {v(f+32+4*k+2,2)}, {v(ka)} offset:{512*k + 64*(3-i) + 8}')
        return ins
    pairs = sorted([(c, k) for c in range(8) for k in range(8) if c + k <= 7], key=lambda p: (max(p), p))
    def conv(its, ua, ka, ac):
        q_ = [x for i in its for x in loads(i, ua, ka)]
        issued = 0; done = 0; first = set()
        def issue(n, lim):
            nonlocal issued
            for _ in range(n):
                if q_ and issued < lim: a(q_.pop(0)); issued += 1
        a('s_waitcnt lgkmcnt(0)')
        issue(12, 99)
        for n_, i in enumerate(its):
            f = vF[i & 1]
            for idx, (c, k) in enumerate(pairs):
                need = 24 * n_ + 3 * (max(c, k) + 1)
                if need > done:
                    while issued < need: issue(1, 999)
                    w = issued - need
                    assert w <= 15
                    a(f's_waitcnt lgkmcnt({w})'); done = need
                n = ac + 4 * (c + k)
                cin = v(n, 4) if n in first else '0'
                first.add(n)
                a(f'v_mfma_f32_16x16x32_bf16 {v(n,4)}, {v(f+4*c,4)}, {v(f+32+4*k,4)}, {cin}')
                if issued - done < 15: issue(1, 24 * (n_ + 2))
    conv(range(4), vUA, vKA, vAC)
    st(8)
    a(f's_cmp_eq_u32 {s(sNH)}, 0')
    a(f's_cbranch_scc1 {L}_ny')
    a('s_barrier')
    a('s_barrier')
    a.label(f'{L}_ny')
    a(f's_add_u32 {s(sT0)}, {s(sC)}, 4')
    a(f's_cmp_lt_u32 {s(sC)}, 2')
    a(f's_cselect_b32 {s(sT0)}, {s(sC)}, {s(sT0)}')
    a(f's_mul_i32 {s(sT0)}, {s(sT0)}, {T_WAVE}')
    a(f's_lshl_b32 {s(sT1)}, {s(sHF)}, 12')
    a(f's_add_u32 {s(sT1)}, {s(sT1)}, {s(sT0)}')
    a(f'v_add_u32 v3, {s(sT1)}, {v(vL16)}')
    a(f'v_add_u32 v2, {s(sT0)}, {v(vL16)}')
    a(f's_cmp_eq_u32 {s(sHF)}, 1')
    a(f's_cbranch_scc1 {L}_red1')
    for n in range(4): a(f'ds_write_b128 v2, {v(vAC+16+4*n,4)} offset:{4096 + 1024*n}')
    a(f's_branch {L}_red2')
    a.label(f'{L}_red1')
    for n in range(4): a(f'ds_write_b128 v2, {v(vAC+4*n,4)} offset:{1024*n}')
    for i in range(8): a(f'v_mov_b64 {v(vAC+2*i,2)}, {v(vAC+16+2*i,2)}')
    a.label(f'{L}_red2')
    a(f's_cmp_eq_u32 {s(sNH)}, 0')
    a(f's_cbranch_scc1 {L}_c5')
    conv((2, 3), vUA5, vKA5, vAC5)
    a.label(f'{L}_c5')
    a('s_waitcnt lgkmcnt(0)')
    st(9)
    a('s_barrier')
    st(10)
    for n in range(4): a(f'ds_read_b128 {v(112+4*n,4)}, v3 offset:{1024*n}')
    a(f's_cmp_eq_u32 {s(sNH)}, 0')
    a(f's_cbranch_scc1 {L}_r5')
    a(f's_lshl_b32 {s(sT0)}, {s(sW)}, 10')
    a(f's_add_u32 {s(sT0)}, {s(sT0)}, {LDS_U - 2048}')
    a(f'v_add_u32 v2, {s(sT0)}, {v(vL16)}')
    for n in range(8): a(f'ds_write_b128 v2, {v(vAC5+4*n,4)} offset:{4096*n}')
    a.label(f'{L}_r5')
    a(f's_lshl_b32 {s(sT0)}, {s(sCH)}, 12')
    a(f's_lshl_b32 {s(sT1)}, {s(sHF)}, 11')
    a(f's_add_u32 {s(sT0)}, {s(sT0)}, {s(sT1)}')
    a(f's_add_u32 {s(sT0)}, {s(sT0)}, {WS_B:#x}')
    a('s_waitcnt lgkmcnt(0)')
    SC = ' sc1' if tail else ''
    for n in range(4):
        a(f'v_pk_add_f32 {v(112+4*n,2)}, {v(112+4*n,2)}, {v(vAC+4*n,2)}')
        a(f'v_pk_add_f32 {v(112+4*n+2,2)}, {v(112+4*n+2,2)}, {v(vAC+4*n+2,2)}')
        a(f'v_cvt_pk_bf16_f32 {v(128+2*n)}, {v(112+4*n)}, {v(112+4*n+1)}')
        a(f'v_cvt_pk_bf16_f32 {v(128+2*n+1)}, {v(112+4*n+2)}, {v(112+4*n+3)}')
        a(f'buffer_store_dwordx2 {v(128+2*n,2)}, {v(vL8)}, {s(rWS,4)}, {s(sT0)} offen offset:{512*n}{SC}')
    a(f's_cmp_eq_u32 {s(sB5)}, 0')
    a(f's_cbranch_scc1 {L}_fin')
    a('s_barrier')
    a(f's_lshl_b32 {s(sT0)}, {s(sW)}, 12')
    a(f's_add_u32 {s(sT0)}, {s(sT0)}, {LDS_U}')
    a(f'v_add_u32 v2, {s(sT0)}, {v(vL16)}')
    for n in range(4): a(f'ds_read_b128 {v(144+4*n,4)}, v2 offset:{1024*n}')
    a(f's_lshl_b32 {s(sT0)}, {s(sC5)}, 12')
    a(f's_lshl_b32 {s(sT1)}, {s(sW)}, 9')
    a(f's_add_u32 {s(sT0)}, {s(sT0)}, {s(sT1)}')
    a(f's_add_u32 {s(sT0)}, {s(sT0)}, {WS_B:#x}')
    for n in range(1, 4):
        a(f's_waitcnt lgkmcnt({3-n})')
        for p_ in range(2): a(f'v_pk_add_f32 {v(144+2*p_,2)}, {v(144+2*p_,2)}, {v(144+4*n+2*p_,2)}')
    a('v_cvt_pk_bf16_f32 v160, v144, v145')
    a('v_cvt_pk_bf16_f32 v161, v146, v147')
    a(f'buffer_store_dwordx2 v[160:161], {v(vL8)}, {s(rWS,4)}, {s(sT0)} offen{SC}')
    a.label(f'{L}_fin')
    st(11)
    if tail: tail()
    else:
        if st.enabled: a('s_waitcnt vmcnt(0)')
        st(12)
        st.flush()
        a('s_endpgm')
```

```python
import sys
from build import *
import gq, ssm, k2
STAMP = len(sys.argv) > 2 and sys.argv[2] == 'stamp'
def gen_k1(a):
    st = Stamper(a, 0, STAMP)
    a(f's_cmp_ge_u32 s2, {gq.G_NWG + ssm.S_NWG}')
    a('s_cbranch_scc1 k1_end')
    a(f's_cmp_ge_u32 s2, {gq.G_NWG}')
    a('s_cbranch_scc1 k1_ssm')
    gq.gen_g(a, stamp=st)
    a.label('k1_ssm')
    a(f's_sub_u32 s3, s2, {gq.G_NWG}')
    ssm.gen_ssm(a, sid='s3', stamp=st)
    a.label('k1_end')
    a('s_endpgm')
out = sys.argv[1] if len(sys.argv) > 1 else f'cdna_kernels/{NAME}.s'
build([('k1_kernel', gen_k1, gq.G_NWG + ssm.S_NWG, 512, gq.G_LDS, 256),
       ('k2_kernel', lambda a: k2.gen_k2(a, Stamper(a, 0x80000, STAMP)), k2.K2_NWG, 512, k2.K2_LDS, 256)], out)
```

```python
import sys, importlib
from common import *
import k2
def header(launches):
    ref = open(f'cdna_kernels/{NAME}.s.ref').read().split('\n')
    hdr = [l for l in ref if l.startswith(';') and '@launch' not in l and 'Override launch' not in l and 'grid=ceil' not in l]
    out = '\n'.join(hdr) + '\n'
    for k, g, b, lds in launches:
        out += f'; @launch kernel={k} grid=({g},1,1) block=({b},1,1) lds={lds}\n'
    out += '.amdgcn_target "amdgcn-amd-amdhsa--gfx950"\n.text\n'
    return out
def build(kernels, path):
    txt = header([(k[0], k[2], k[3], k[4]) for k in kernels])
    seen = []
    for label, gen, grid, block, lds, vg in kernels:
        if label in seen: continue
        seen.append(label)
        a = Asm(); gen(a)
        txt += f'.globl {label}\n.p2align 12\n.type {label},@function\n{label}:\n' + a.render()
    seen = []
    for label, gen, grid, block, lds, vg in kernels:
        if label in seen: continue
        seen.append(label)
        txt += kernel_desc(label, vg)
    open(path, 'w').write(txt)
if __name__ == '__main__':
    build([('k2_kernel', k2.gen_k2, k2.K2_NWG, 512, k2.K2_LDS, 256)], 'k2only.s')
```

```python
from asmlib import *
import math, struct
NAME = 'gated_mix__linear_attn_block__ssm_conv_s4d__prompt'
KA = dict(x=0, wqkv=8, wo=16, u=24, lar=32, aim=40, cr=48, ci=56, ldt=64, dsk=72, gw=80, out=88, dbg=96, ws=104)
WS_O = 0x000000
WS_B = 0x240000
WS_G = 0x480000
WS_P = 0x490000
WS_F = 0x560000
WS_FU = 0x570000
WS_U = 0x700000
WS_T = 0x600000
WS_SIZE = 0x940000
XB = 2048 * 576 * 2
WB = 576 * 1728 * 2
WOB = 576 * 576 * 2
def f32(x): return '0x%08x' % struct.unpack('<I', struct.pack('<f', x))[0]
LOG2E = f32(math.log2(math.e))
P = {k: 4 + o // 4 for k, o in KA.items()}
rX, rW, rWS = 32, 36, 40
rWO, rOUT = 12, 16
sW = 44
SPIN = 0x8000

def srd(a, d, base, nbytes):
    a(f's_mov_b32 {s(d)}, {s(base)}')
    a(f's_and_b32 {s(d+1)}, {s(base+1)}, 0xffff')
    a(f's_mov_b32 {s(d+2)}, {nbytes:#x}')
    a(f's_mov_b32 {s(d+3)}, 0x20000')

def kernel_desc(name, vgpr=256, sgpr=102):
    return f'''.section .rodata,"a"
.p2align 6
.amdhsa_kernel {name}
  .amdhsa_next_free_vgpr {vgpr}
  .amdhsa_next_free_sgpr {sgpr}
  .amdhsa_accum_offset {(vgpr + 3) // 4 * 4}
  .amdhsa_group_segment_fixed_size 0
  .amdhsa_kernarg_size 112
  .amdhsa_user_sgpr_count 2
  .amdhsa_user_sgpr_kernarg_segment_ptr 1
  .amdhsa_system_sgpr_workgroup_id_x 1
.end_amdhsa_kernel
'''

class Stamper:
    def __init__(self, a, region=0, enabled=True):
        self.a = a; self.region = region; self.enabled = enabled; self.keep = (0,)
    def __call__(self, k):
        if not self.enabled: return
        a = self.a
        if self.enabled == 'light' and k not in self.keep: return
        if k == 0:
            a('s_memrealtime s[100:101]')
        a(f's_memtime {s(70+2*k,2)}')
        a('s_waitcnt lgkmcnt(0)')
    def value(self, k, sreg):
        if not self.enabled or (self.enabled == 'light' and k not in self.keep): return
        self.a(f's_add_u32 s{70+2*k}, s70, {sreg}'); self.a(f's_addc_u32 s{71+2*k}, s71, 0')
    def init(self):
        if not self.enabled: return
        for i in range(72, 100, 2): self.a(f's_mov_b64 s[{i}:{i+1}], 0')
    def flush(self):
        if not self.enabled: return
        a = self.a
        a('s_memrealtime s[98:99]')
        a(f's_load_dwordx2 s[66:67], s[0:1], {KA["ws"]}')
        a('s_waitcnt lgkmcnt(0)')
        a('s_mov_b32 s64, s66'); a('s_and_b32 s65, s67, 0xffff'); a(f's_mov_b32 s66, {WS_SIZE:#x}'); a('s_mov_b32 s67, 0x20000')
        a('s_mov_b64 exec, -1')
        a('v_lshrrev_b32 v250, 6, v0')
        a('v_lshlrev_b32 v250, 7, v250')
        a('s_lshl_b32 s68, s2, 10')
        a(f's_add_u32 s68, s68, {WS_T + self.region:#x}')
        a('s_mov_b64 exec, 1')
        for k in range(8):
            for i in range(4): a(f'v_mov_b32 v{252+i}, s{70+4*k+i}')
            a(f'buffer_store_dwordx4 v[252:255], v250, s[64:67], s68 offen offset:{16*k}')
        a('s_waitcnt vmcnt(0)')

COST = lambda t: (8 if t.startswith(TRANS) else 4 if t.startswith(('v_pk_', 'v_cvt_pk', 'v_perm', 'v_mov_b64', 'ds_', 'buffer_', 'v_mfma')) or 'dpp' in t else 2)
class VQ:
    def __init__(self, a): self.a = a; self.q = []
    def add(self, text, after=0): self.q.append((after, text))
    def emit(self, m, budget):
        while self.q and self.q[0][0] <= m and budget > 0:
            t = self.q.pop(0)[1]; self.a(t); budget -= max(COST(t), 4)
    def flush(self):
        for _, t in self.q: self.a(t)
        self.q = []

class Shifted:
    def __init__(self, base, sh, on=True): self.b = base; self.sh = sh; self.on = on; self.enabled = base.enabled
    def __call__(self, k):
        if self.on: self.b(k + self.sh)
    def value(self, k, r):
        if self.on: self.b.value(k + self.sh, r)
    def flush(self): self.b.flush()
```

```python
from common import *

G_NWG = 128
SLOT = 40960
G_LDS = 4 * SLOT
OFF_K, OFF_V = 16384, 28672
RED = 0
FRG = 24576
DUM = 32768
TOFF = (0, 40, 72, 112)
sRB, sHG, sT0, sT1, sT2, sI, sXB, sWB, sLX, sLW, sID = range(45, 56)
vL = 1
L = 'g'

def g_ids(a, gid='s2'):
    a(f's_lshr_b32 {s(sT1)}, {gid}, 3')
    a(f's_and_b32 {s(sT0)}, {s(sT1)}, 3')
    a(f's_lshr_b32 {s(sT1)}, {s(sT1)}, 2')
    a(f's_and_b32 {s(sRB)}, {gid}, 6')
    a(f's_lshl1_add_u32 {s(sRB)}, {s(sRB)}, {s(sT0)}')
    a(f's_and_b32 {s(sHG)}, {gid}, 1')
    a(f's_lshl2_add_u32 {s(sHG)}, {s(sHG)}, {s(sT1)}')
    a(f's_lshl4_add_u32 {s(sID)}, {s(sHG)}, {s(sRB)}')

def o_addr(a, sM, sR):
    a(f's_lshl_b32 {s(sR)}, {s(sRB)}, 2')
    a(f's_add_u32 {s(sR)}, {s(sR)}, {s(sW)}')
    a(f's_mul_i32 {s(sR)}, {s(sR)}, {2*18*1024}')
    a(f's_lshl_b32 {s(sM)}, {s(sHG)}, 11')
    a(f's_add_u32 {s(sM)}, {s(sM)}, {s(sR)}')
    a(f's_lshl_b32 {s(sT2)}, {s(sHG)}, 8')
    a(f's_add_u32 {s(sR)}, {s(sR)}, {s(sT2)}')
    a(f's_add_u32 {s(sR)}, {s(sR)}, {16*1024}')

def gen_compute(a, st, tail=None, DBG=False):
    st0 = st
    if DBG:
        st = Stamper(a, 0, 'light'); st.keep = (1,)
    sL2 = 56
    sM1, sM2, sM3, sMG, sMO = 58, 60, 62, 64, 66
    vXA, vWA, vSH, vSQ = 2, 4, 8, 9
    vT = 10
    X0, ACC, RING = 16, 160, 232
    NS = 6
    a(f'v_and_b32 v10, 15, {v(vL)}')
    a(f'v_lshrrev_b32 v11, 4, {v(vL)}')
    a('v_lshrrev_b32 v12, 1, v10')
    a('v_xor_b32 v12, v12, v11')
    a('v_lshlrev_b32 v13, 7, v10')
    a(f's_lshl_b32 {s(sT0)}, {s(sW)}, 12')
    a(f'v_add_u32 v13, {s(sT0)}, v13')
    a(f'v_lshl_add_u32 {v(vXA)}, v12, 4, v13')
    a(f'v_xor_b32 {v(vXA+1)}, 64, {v(vXA)}')
    a(f'v_bfe_u32 v12, {v(vL)}, 2, 2')
    a('v_lshl_add_u32 v12, v11, 3, v12')
    a('v_mul_u32_u24 v12, 192, v12')
    a(f'v_and_b32 v13, 3, {v(vL)}')
    a('v_and_b32 v14, 1, v11')
    a('v_lshlrev_b32 v14, 5, v14')
    a(f's_and_b32 {s(sT0)}, {s(sHG)}, 3')
    a(f's_lshl_b32 {s(sT0)}, {s(sT0)}, 4')
    a(f'v_lshl_add_u32 v15, v13, 3, {s(sT0)}')
    for h in range(4):
        a(f'v_add_u32 v10, {TOFF[h]}, v15')
        a('v_xor_b32 v10, v10, v14')
        a(f'v_add_u32 {v(vWA+h)}, v10, v12')
    a('v_and_b32 v10, 1, v13')
    a('v_mul_u32_u24 v10, 72, v10')
    a(f'v_add3_u32 v10, v10, {s(sT0)}, 32')
    a('v_xor_b32 v10, v10, v14')
    a('v_add_u32 v10, v10, v12')
    a('v_lshrrev_b32 v13, 1, v13')
    a(f'v_mul_u32_u24 {v(vSQ)}, {OFF_V - OFF_K}, v13')
    a(f'v_add_u32 {v(vSH)}, v10, {v(vSQ)}')
    a(f's_mov_b32 {s(sL2)}, {LOG2E}')
    a(f's_mov_b32 {s(sL2+1)}, {LOG2E}')
    def mask(sreg, pred):
        m = sum(1 << l for l in range(64) if pred(l))
        a(f's_mov_b32 {s(sreg)}, {m & 0xffffffff:#x}')
        a(f's_mov_b32 {s(sreg+1)}, {m >> 32:#x}')
    owner = lambda c: c if c < 4 else ((c - 8) >> 1 if c >= 8 else 0)
    mask(sM1, lambda l: owner(l & 15) == 1); mask(sM2, lambda l: owner(l & 15) == 2); mask(sM3, lambda l: owner(l & 15) == 3)
    mask(sMG, lambda l: (l >> 4) == 1); mask(sMO, lambda l: (l & 15) < 8)
    addr_regs = [vXA, vXA + 1, vWA, vWA + 1, vWA + 2, vWA + 3, vSH]
    a('s_waitcnt lgkmcnt(0)')
    srd(a, rWS, P['ws'], WS_SIZE)
    a('s_waitcnt vmcnt(0)')
    st(1)

    class Pipe:
        def __init__(self): self.fifo = []
        def issue(self, text, tag): a(text); self.fifo.append(tag)
        def wait(self, tags):
            idx = max([i for i, t in enumerate(self.fifo) if t in tags], default=-1)
            if idx < 0: return
            n = len(self.fifo) - idx - 1
            assert n <= 15
            a(f's_waitcnt lgkmcnt({n})'); self.fifo = self.fifo[idx + 1:]
        def drain(self):
            a('s_waitcnt lgkmcnt(0)'); self.fifo = []
    PP = Pipe()
    cur_slot = [0]
    def move_slot(new, regs):
        d = (new - cur_slot[0]) * SLOT
        cur_slot[0] = new
        if d == 0: return
        for r in regs:
            if d > 0: a(f'v_add_u32 {v(r)}, {d}, {v(r)}')
            else: a(f'v_subrev_u32 {v(r)}, {-d}, {v(r)}')

    def run_phase(N, NS, loads_of, tags_of, mfmas_of, stage_of, enter_stage, DELAY=2, extra=None, pair=False):
        q = [(n, t, tag) for n in range(N) for (t, tag) in loads_of(n)]
        stage = [None]; hold = [0]; mc = 0
        def pump(k, limit, force=False):
            while q and k > 0 and q[0][0] <= limit:
                sg = stage_of(q[0][0])
                if sg != stage[0]:
                    if not force: return
                    enter_stage(sg); stage[0] = sg; hold[0] = 0
                n, t, tag = q.pop(0)
                PP.issue(t() if callable(t) else t, tag); k -= 1
        pump(99, NS - 2, True)
        for n in range(N):
            pump(99, n, True)
            tg = set(tags_of(n))
            if pair and n + 1 < N and tg & set(PP.fifo) and (not q or q[0][0] > n + 3): tg |= set(tags_of(n + 1))
            PP.wait(tg)
            for m in mfmas_of(n):
                a(m); mc += 1
                backlog = sum(1 for x in q if x[0] <= n + NS - 2)
                pump(2 if backlog > 1 else 1, n + NS - 1)
                if extra: extra(mc)
            if q and stage_of(q[0][0]) != stage[0] and q[0][0] <= n + NS - 1:
                hold[0] += 1
                if hold[0] > DELAY: pump(1, n + NS - 1, True)

    def phi_ops(pairs, tmps, pk):
        out = []
        G = len(tmps) // 2
        for j in range(0, len(pairs), G):
            grp = pairs[j:j+G]
            T = lambda k: tmps[2*k]
            for k, (r, d) in enumerate(grp):
                if pk: out.append(f'v_pk_mul_f32 {v(T(k),2)}, {v(r,2)}, {s(sL2,2)}')
                else:
                    for e in range(2): out.append(f'v_mul_f32 {v(T(k)+e)}, {s(sL2)}, {v(r+e)}')
            for k, (r, d) in enumerate(grp):
                for e in range(2):
                    out.append(f'v_exp_f32 {v(T(k)+e)}, {v(T(k)+e)} clamp')
                    out.append(f'v_max_f32 {v(r+e)}, {f32(1e-6)}, {v(r+e)}')
            for k, (r, d) in enumerate(grp):
                if pk: out.append(f'v_pk_add_f32 {v(r,2)}, {v(r,2)}, {v(T(k),2)}')
                else:
                    for e in range(2): out.append(f'v_add_f32 {v(r+e)}, {v(r+e)}, {v(T(k)+e)}')
            for k, (r, d) in enumerate(grp): out.append(f'v_cvt_pk_bf16_f32 {v(d)}, {v(r)}, {v(r+1)}')
        return out

    T8 = (5, 6, 7, 8, 4, 0, 1, 2, 3)
    kvg = [(i, kk, T) for i in range(8) for kk in range(2) for T in range(9)] + [(8, kk, T) for T in T8 for kk in range(2)]
    xreg = lambda i, kk, rt: X0 + ((2 * i + kk) * 2 + rt) * 4
    def kv_loads(n):
        i, kk, T = kvg[n]
        out = []
        if T == (0 if i < 8 else T8[0]):
            for rt in range(2):
                out.append((f'ds_read_b128 {v(xreg(i,kk,rt),4)}, {v(vXA+kk)} offset:{2048*rt}', ('x', i, kk)))
        slot = RING + 4 * (n % NS)
        if T < 4: reg, so = vWA + T, OFF_K
        elif T == 4: reg, so = vSH, OFF_K
        else: reg, so = vWA + T - 5, OFF_V
        for rd in range(2):
            out.append((f'ds_read_b64_tr_b16 {v(slot+2*rd,2)}, {v(reg)} offset:{so + (32*kk + 4*rd)*192}', ('w', n)))
        return out
    def kv_mfmas(n):
        i, kk, T = kvg[n]
        slot = RING + 4 * (n % NS)
        out = []
        for rt in range(2):
            d = v(ACC + 8 * T + 4 * rt, 4)
            out.append(f'v_mfma_f32_16x16x32_bf16 {d}, {v(xreg(i,kk,rt),4)}, {v(slot,4)}, {d if (i or kk) else 0}')
        return out
    def kv_enter(sg):
        a('s_barrier')
        move_slot(sg % 4, addr_regs)
        if sg in (0, 1, 4, 8): st({0:2, 1:3, 4:4, 8:5}[sg])
        if DBG: st0(2 + sg)
    base = lambda T: ACC + 8 * T
    BS = vT + 2
    MAIN = lambda h: base(5 + h) + 4
    COL = lambda h: RING + 4 * h
    ROW = lambda h: base(h) + 4
    SS = base(4) + 4
    vq = VQ(a)
    done = lambda T: 288 + 4 * (T8.index(T) + 1) + 2
    vq.add(f'v_mov_b32 {v(vT+1)}, 0x3f803f80', 289)
    vq.add(f's_mul_i32 {s(sT0)}, {s(sW)}, 6144', 289)
    vq.add(f'v_lshl_add_u32 {v(vT)}, {v(vL)}, 4, {s(sT0)}', 289)
    for h in range(4):
        for p in range(4): vq.add(f'v_cvt_pk_bf16_f32 {v(base(5+h)+p)}, {v(base(5+h)+2*p)}, {v(base(5+h)+2*p+1)}', done(5 + h))
    for p in range(4): vq.add(f'v_cvt_pk_bf16_f32 {v(BS+p)}, {v(base(4)+2*p)}, {v(base(4)+2*p+1)}', done(4))
    for p in range(4): vq.add(f'v_cndmask_b32 {v(BS+p)}, {v(BS+p)}, {v(vT+1)}, {s(sMO,2)}')
    run_phase(len(kvg), NS, kv_loads, lambda n: [('w', n), ('x', kvg[n][0], kvg[n][1])], kv_mfmas, lambda n: kvg[n][0], kv_enter,
              extra=lambda m: vq.emit(m, 4 if m < 314 else 8))
    vq.flush()
    a('s_barrier')
    if DBG: st0(11)
    st(6)
    mf = lambda d, x, y: a(f'v_mfma_f32_16x16x32_bf16 {v(d,4)}, {v(x,4)}, {v(y,4)}, 0')
    tm = [MAIN(h) + i for h in range(4) for i in range(4)] + list(range(RING, RING + 4))
    for t_ in phi_ops([(base(h) + 2 * p, base(h) + p) for h in (4, 0, 1, 2, 3) for p in range(4)], tm, True): a(t_)
    qregs = [vWA, vWA + 1, vWA + 2, vWA + 3, vSH]
    fill = [f'v_sub_u32 {v(vSH)}, {v(vSH)}, {v(vSQ)}'] + [f'v_add_u32 {v(r)}, {SLOT}, {v(r)}' for r in qregs]
    cur_slot[0] = 1
    def fl(n):
        for _ in range(n):
            if fill: a(fill.pop(0))
    for h in range(4):
        mf(ROW(h), base(4), base(5 + h)); fl(2)
    mf(SS, base(4), BS)
    for h in range(4):
        mf(COL(h), base(h), BS)
        if h == 1:
            for r in range(2): a(f'v_cndmask_b32 {v(ROW(0)+r)}, {v(ROW(0)+r)}, {v(ROW(2)+r)}, {s(sMG,2)}')
        if h == 2:
            for r in range(2, 4): a(f'v_cndmask_b32 {v(ROW(0)+r)}, {v(ROW(1)+r)}, {v(ROW(3)+r)}, {s(sMG,2)}')
        if h == 3:
            for r in range(2): a(f'v_permlane32_swap_b32 {v(ROW(0)+r)}, {v(SS+r)}')
    cm = [f'v_cndmask_b32 {v(COL(0)+r)}, {v(COL(0)+r)}, {v(COL(h)+r)}, {s(m,2)}' for h, m in ((1, sM1), (2, sM2), (3, sM3)) for r in range(4)]
    mf(MAIN(0), base(0), base(5))
    for r in range(2, 4): a(f'v_permlane32_swap_b32 {v(ROW(0)+r)}, {v(SS+r)}')
    mf(MAIN(1), base(1), base(6))
    a(cm.pop(0)); a(cm.pop(0))
    mf(MAIN(2), base(2), base(7))
    a(f'ds_write_b128 {v(vT)}, {v(ROW(0),4)} offset:{RED + 5120}')
    a(cm.pop(0))
    mf(MAIN(3), base(3), base(8))
    for k, t_ in enumerate(cm):
        a(t_)
        if k in (1, 4, 7): a(f'ds_write_b128 {v(vT)}, {v(MAIN(k // 3),4)} offset:{RED + 1024*(k // 3)}')
    a(f'ds_write_b128 {v(vT)}, {v(MAIN(3),4)} offset:{RED + 3072}')
    a(f'ds_write_b128 {v(vT)}, {v(COL(0),4)} offset:{RED + 4096}')
    q2 = [vT + 1 + T for T in range(5)]
    for T in range(5): a(f'v_add_u32 {v(q2[T])}, {2*SLOT}, {v(qregs[T])}')
    a('s_waitcnt lgkmcnt(0)')
    st(7)
    a('s_barrier')
    if DBG: st0(12)
    st(8)
    TORD = (4, 0, 1, 2, 3)
    NQ = 8
    QR = lambda n: RING - 8 + 4 * (n % NQ)
    qg = [(i, kk, T) for i in range(3) for kk in range(2) for T in range(5)] + [(i, kk, T) for T in TORD for i in range(3, 9) for kk in range(2)]
    QA = lambda T, rt: ACC + (2 * T + rt) * 4
    def q_loads(n):
        i, kk, T = qg[n]
        return [(f'ds_read_b64_tr_b16 {v(QR(n)+2*rd,2)}, {v(qregs[T] if i < 6 else q2[T])} offset:{(i%3)*12288 + (32*kk + 4*rd)*192}', ('w', n)) for rd in range(2)]
    def q_mfmas(n):
        i, kk, T = qg[n]
        out = []
        for rt in range(2):
            d = v(QA(T, rt), 4)
            out.append(f'v_mfma_f32_16x16x32_bf16 {d}, {v(QR(n),4)}, {v(xreg(i,kk,rt),4)}, {d if (i or kk) else 0}')
        return out
    def q_enter(sg):
        if sg:
            a('s_barrier')
            move_slot(2, qregs)
    tq = list(range(ACC + 40, ACC + 48))
    for k, T in enumerate(TORD):
        for t_ in phi_ops([(QA(T, rt) + 2 * p, QA(T, rt) + p) for rt in range(2) for p in range(2)], tq, k == 4): vq.add(t_, 60 + 24 * (k + 1) + 2)
        if T < 4:
            for rt in range(2):
                for e in range(2): vq.add(f'v_mov_b32 {v(QA(T,rt)+2+e)}, {v(QA(4,rt)+e)}')
    run_phase(len(qg), NQ, q_loads, lambda n: [('w', n)], q_mfmas, lambda n: int(n >= 30), q_enter, DELAY=2, extra=lambda m: vq.emit(m, 8), pair=True)
    st(9)
    o_addr(a, sT1, sT0)
    a(f'v_lshlrev_b32 {v(vT)}, 4, {v(vL)}')
    a(f'v_add_u32 {v(vT+1)}, {18*1024}, {v(vT)}')
    a(f'v_lshlrev_b32 {v(vT+2)}, 2, {v(vL)}')
    a(f'v_add_u32 {v(vT+3)}, {18*1024}, {v(vT+2)}')
    vq.flush()
    st(10)
    a('s_barrier')
    st(11)
    FR = 16; NUMO = 48; REMO = 80; RC = 88; OUT = 104
    for f in (4, 5, 6, 7, 0, 1, 2, 3):
        a(f'ds_read_b128 {v(FR+4*f,4)}, {v(vT)} offset:{FRG + 1024*f}')
    for h in range(4):
        a(f's_waitcnt lgkmcnt({7-h})')
        for rt in range(2):
            d = v(REMO + 4 * rt, 4)
            a(f'v_mfma_f32_16x16x32_bf16 {d}, {v(FR+16+4*h,4)}, {v(QA(h,rt),4)}, {d if h else 0}')
    rc = []
    def both(fn):
        for rt in range(2): rc.append(fn(RC + 8 * rt, REMO + 4 * rt + 2))
    both(lambda r, dn: f'v_cvt_pk_bf16_f32 {v(r)}, {v(dn)}, {v(dn)}')
    both(lambda r, dn: f'v_lshlrev_b32 {v(r)}, 16, {v(r)}')
    both(lambda r, dn: f'v_add_f32 {v(r)}, {f32(1e-6)}, {v(r)}')
    both(lambda r, dn: f'v_cvt_pk_bf16_f32 {v(r)}, {v(r)}, {v(r)}')
    both(lambda r, dn: f'v_lshlrev_b32 {v(r)}, 16, {v(r)}')
    both(lambda r, dn: f'v_rcp_f32 {v(r+4)}, {v(r)}')
    both(lambda r, dn: f'v_mov_b32 {v(r)}, {v(r+4)}')
    both(lambda r, dn: f'v_mov_b32 {v(r+1)}, {v(r+4)}')
    both(lambda r, dn: f'v_permlane16_swap_b32 {v(r)}, {v(r+1)}')
    both(lambda r, dn: f'v_mov_b32 {v(r+2)}, {v(r)}')
    both(lambda r, dn: f'v_mov_b32 {v(r+3)}, {v(r+1)}')
    both(lambda r, dn: f'v_permlane32_swap_b32 {v(r)}, {v(r+2)}')
    both(lambda r, dn: f'v_permlane32_swap_b32 {v(r+1)}, {v(r+3)}')
    k = 0
    for h in range(4):
        a(f's_waitcnt lgkmcnt({3-h})')
        for rt in range(2):
            a(f'v_mfma_f32_16x16x32_bf16 {v(NUMO+(2*h+rt)*4,4)}, {v(FR+4*h,4)}, {v(QA(h,rt),4)}, 0')
            k += 1
            if k >= 2:
                for _ in range(4):
                    if rc: a(rc.pop(0))
    for t in rc: a(t)
    for rt in range(2):
        r = RC + 8 * rt; o = OUT + 12 * rt
        for h in range(4):
            n = NUMO + (2 * h + rt) * 4
            sel = f'op_sel:[0,{h&1}] op_sel_hi:[1,{h&1}]'
            a(f'v_pk_mul_f32 {v(n,2)}, {v(n,2)}, {v(r+(h&2),2)} {sel}')
            a(f'v_pk_mul_f32 {v(n+2,2)}, {v(n+2,2)}, {v(r+(h&2),2)} {sel}')
            a(f'v_cvt_pk_bf16_f32 {v(o+2*h)}, {v(n)}, {v(n+1)}')
            a(f'v_cvt_pk_bf16_f32 {v(o+2*h+1)}, {v(n+2)}, {v(n+3)}')
            if h & 1:
                a(f'buffer_store_dwordx4 {v(o+2*h-2,4)}, {v(vT+rt)}, {s(rWS,4)}, {s(sT1)} offen offset:{(h>>1)*1024} sc1')
        n = REMO + 4 * rt
        a(f'v_pk_mul_f32 {v(n,2)}, {v(n,2)}, {v(r+4,2)} op_sel:[0,0] op_sel_hi:[1,0]')
        a(f'v_cvt_pk_bf16_f32 {v(o+8)}, {v(n)}, {v(n+1)}')
        a(f'buffer_store_dword {v(o+8)}, {v(vT+2+rt)}, {s(rWS,4)}, {s(sT0)} offen sc1')
    st(12)
    if tail: tail()
    else:
        if st.enabled: a('s_waitcnt vmcnt(0)')
        st(13)
        st.flush()
        a('s_endpgm')

vTAG = 28
def gen_loader(a, st0, tail=None, pre_f=None, DBG=False):
    st = st0
    sd = (lambda k: st0(k)) if DBG else (lambda k: None)
    sPI, sOM, sOR, sPS, sP0 = 56, 57, 58, 59, 60
    a('s_setprio 3')
    a(f's_sub_u32 {s(sW)}, {s(sW)}, 4')
    VX, VW = 4, 8
    a(f'v_lshrrev_b32 v2, 3, {v(vL)}')
    a('v_mul_u32_u24 v2, 1152, v2')
    a(f'v_and_b32 v3, 7, {v(vL)}')
    a(f'v_lshrrev_b32 v12, 4, {v(vL)}')
    a('v_xor_b32 v3, v3, v12')
    a(f'v_lshl_add_u32 {v(VX)}, v3, 4, v2')
    a(f'v_xor_b32 {v(VX+1)}, 64, {v(VX)}')
    a(f'v_add_u32 {v(VX+2)}, {2*(9216-1024)}, {v(VX)}')
    a(f'v_add_u32 {v(VX+3)}, {3*(9216-1024)}, {v(VX+1)}')
    a(f'v_add_u32 {v(VX+1)}, {9216-1024}, {v(VX+1)}')
    a(f's_mov_b32 {s(sT0)}, 0x5556')
    for i in range(3):
        a(f'v_add_u32 v3, {64*i}, {v(vL)}')
        a('v_lshrrev_b32 v12, 2, v3')
        a(f'v_mul_u32_u24 v13, {s(sT0)}, v12')
        a('v_lshrrev_b32 v13, 16, v13')
        a('v_mul_u32_u24 v14, 12, v13')
        a('v_sub_u32 v14, v3, v14')
        a('v_lshrrev_b32 v15, 2, v13')
        a('v_and_b32 v15, 2, v15')
        a('v_xor_b32 v14, v14, v15')
        a('v_mul_u32_u24 v13, 3456, v13')
        a(f'v_lshl_add_u32 {v(VW+i)}, v14, 4, v13')
        if i: a(f'v_subrev_u32 {v(VW+i)}, {1024*i}, {v(VW+i)}')
    a(f's_lshl2_add_u32 {s(sT0)}, {s(sRB)}, {s(sW)}')
    a(f's_mul_i32 {s(sXB)}, {s(sT0)}, {32*1152}')
    a(f's_mul_i32 {s(sWB)}, {s(sHG)}, 144')
    a(f's_and_b32 {s(sWB)}, {s(sWB)}, 0xffc0')
    a(f's_mul_i32 {s(sT0)}, {s(sW)}, {16*3456}')
    a(f's_add_u32 {s(sWB)}, {s(sWB)}, {s(sT0)}')
    a(f's_lshl_b32 {s(sLX)}, {s(sW)}, 12')
    a(f's_mul_i32 {s(sLW)}, {s(sW)}, 3072')
    a(f'v_and_b32 v11, 15, {v(vL)}')
    a('v_lshlrev_b32 v12, 3, v11')
    vL16, vS = 2, 76
    a(f'v_lshlrev_b32 {v(vL16)}, 4, {v(vL)}')
    a(f's_lshl2_add_u32 {s(sPS)}, {s(sID)}, {s(sW)}')
    a(f's_mul_i32 {s(sPS)}, {s(sPS)}, 1536')
    a(f's_add_u32 {s(sPS)}, {s(sPS)}, {WS_P:#x}')
    a('s_waitcnt lgkmcnt(0)')
    srd(a, rX, P['x'], XB); srd(a, rW, P['wqkv'], WB)
    fifo = []
    def vm(text, tag): a(text); fifo.append(tag)
    def vwait(tag, extra=''):
        idx = max(i for i, t in enumerate(fifo) if t == tag)
        a(f's_waitcnt vmcnt({len(fifo) - idx - 1}){extra}')
        del fifo[:idx + 1]
    def issue(k, mid=None):
        sl = (k % 4) * SLOT
        a(f's_add_u32 {s(sT0)}, {s(sXB)}, {128*k}')
        a(f's_add_u32 m0, {s(sLX)}, {sl}')
        a(f's_add_u32 {s(sT1)}, {s(sWB)}, {k*64*3456 + 1152}')
        for i in range(4): vm(f'buffer_load_dwordx4 {v(VX+i)}, {s(rX,4)}, {s(sT0)} offen offset:{1024*i} lds', k)
        if mid: mid()
        a(f's_add_u32 m0, {s(sLW)}, {sl + OFF_K}')
        a(f's_add_u32 {s(sT0)}, {s(sT1)}, 1152')
        for i in range(3): vm(f'buffer_load_dwordx4 {v(VW+i)}, {s(rW,4)}, {s(sT1)} offen offset:{1024*i} lds', k)
        a(f's_add_u32 m0, {s(sLW)}, {sl + OFF_V}')
        for i in range(3): vm(f'buffer_load_dwordx4 {v(VW+i)}, {s(rW,4)}, {s(sT0)} offen offset:{1024*i} lds', k)
    def issue_q(j, mid=None):
        for b in range(3):
            a(f's_add_u32 {s(sT1)}, {s(sWB)}, {(3*j+b)*64*3456}')
            a(f's_add_u32 m0, {s(sLW)}, {(j+1)*SLOT + 12288*b}')
            for i in range(3): vm(f'buffer_load_dwordx4 {v(VW+i)}, {s(rW,4)}, {s(sT1)} offen offset:{1024*i} lds', f'q{j}')
            if b == 0 and mid: mid()
    GW, GA, GX = 32, 50, 54
    def add2(d, x, y, op='add'):
        for e in range(2): a(f'v_{op}_f32 {v(d+e)}, {v(x+e)}, {v(y+e)}')
    issue(0)
    st(1)
    vL16, vH8, vHP, vGA, vD0, vFL, vRD, vRH, vGS, vO1 = 2, 3, 16, 17, 22, 23, 24, 25, 26, 27
    def consts():
        a(f'v_and_b32 v13, 31, {v(vL)}')
        a(f'v_lshrrev_b32 v14, 5, {v(vL)}')
        a('v_lshlrev_b32 v13, 4, v13')
        a(f'v_lshl_add_u32 {v(vH8)}, v14, 3, v13')
        a('v_mul_u32_u24 v14, 6144, v14')
        a(f'v_add_u32 {v(vHP)}, v14, v13')
        a(f's_lshl2_add_u32 {s(sT0)}, {s(sHG)}, {s(sW)}')
        a(f's_lshl_b32 {s(sT0)}, {s(sT0)}, 2')
        a(f'v_lshrrev_b32 v21, 4, {v(vL)}')
        a(f'v_add_u32 v13, {s(sT0)}, v21')
        a(f's_lshl_b32 {s(sT1)}, {s(sRB)}, 9')
        a(f'v_lshl_add_u32 {v(vGS)}, v13, 2, {s(sT1)}')
        a('v_bfe_u32 v14, v13, 1, 3')
        a('v_lshrrev_b32 v15, 1, v11')
        a('v_xor_b32 v14, v14, v15')
        a('v_lshlrev_b32 v13, 7, v13')
        a('v_lshl_add_u32 v13, v14, 4, v13')
        a('v_and_b32 v14, 1, v11')
        a(f'v_lshl_add_u32 {v(vGA)}, v14, 3, v13')
        a(f'v_add_u32 {v(vGA+1)}, {2*SLOT}, {v(vGA)}')
        a(f's_lshl_b32 {s(sT0)}, {s(sHG)}, 4')
        a(f'v_add_u32 v13, {s(sT0)}, {v(vL)}')
        a(f'v_and_b32 v14, 7, {v(vL)}')
        a(f'v_lshl_add_u32 v14, v14, 4, {s(sRB)}')
        a(f'v_cmp_gt_u32 vcc, 16, {v(vL)}')
        a('v_cndmask_b32 v13, v14, v13, vcc')
        a(f'v_lshlrev_b32 {v(vFL)}, 7, v13')
        a(f's_and_b32 {s(sPI)}, {s(sW)}, 1')
        a(f's_lshl_b32 {s(sT0)}, {s(sW)}, 10')
        a(f'v_add_u32 {v(vRD)}, {s(sT0)}, {v(vL16)}')
        a(f's_lshr_b32 {s(sT0)}, {s(sW)}, 1')
        a(f's_lshl_b32 {s(sT0)}, {s(sT0)}, 10')
        a(f's_lshl3_add_u32 {s(sT0)}, {s(sPI)}, {s(sT0)}')
        a(f'v_add_u32 {v(vRH)}, {s(sT0)}, {v(vL16)}')
        for i in range(4): a(f'v_mov_b32 {v(GA+i)}, 0')

        scatter_addr()
    def scatter_addr():
        vC, vGg = 11, 21
        t = list(range(64, 74))
        a(f'v_subrev_u32 v{t[0]}, 8, {v(vC)}')
        a(f'v_ashrrev_i32 v{t[0]}, 1, v{t[0]}')
        a(f'v_and_b32 v{t[1]}, 1, {v(vC)}')
        a(f'v_mov_b32 v{t[2]}, {DUM}')
        a(f's_lshl_b32 {s(sT0)}, {s(sPI)}, 2')
        a(f's_cmp_ge_u32 {s(sW)}, 2')
        a(f's_cbranch_scc1 {L}_sc1')
        a(f'v_cmp_gt_u32 vcc, 8, {v(vC)}')
        a(f'v_cndmask_b32 v{t[3]}, v{t[0]}, {v(vC)}, vcc')
        a(f'v_cndmask_b32 v{t[4]}, v{t[1]}, 2, vcc')
        a(f'v_mul_u32_u24 v{t[3]}, {1024 + 64}, v{t[3]}')
        a(f'v_lshl_add_u32 v{t[3]}, v{t[4]}, 4, v{t[3]}')
        a(f'v_lshl_add_u32 v{t[3]}, {v(vGg)}, 8, v{t[3]}')
        a(f's_add_u32 {s(sT0)}, {s(sT0)}, {FRG + 4096}')
        a(f'v_add_u32 v{t[3]}, {s(sT0)}, v{t[3]}')
        a(f'v_and_b32 v{t[4]}, 12, {v(vC)}')
        a(f'v_cmp_eq_u32 vcc, 4, v{t[4]}')
        a(f'v_cndmask_b32 {v(vD0)}, v{t[3]}, v{t[2]}, vcc')
        a(f's_branch {L}_sc2')
        a.label(f'{L}_sc1')
        a(f'v_and_b32 v{t[3]}, 1, {v(vGg)}')
        a(f'v_lshl_add_u32 v{t[4]}, v{t[3]}, 1, {s(sPI)}')
        a(f'v_lshlrev_b32 v{t[5]}, 10, v{t[4]}')
        a(f'v_lshl_add_u32 v{t[5]}, v{t[3]}, 8, v{t[5]}')
        a(f's_add_u32 {s(sT0)}, {s(sT0)}, {FRG + 8}')
        a(f'v_add_u32 v{t[5]}, {s(sT0)}, v{t[5]}')
        a(f'v_lshl_add_u32 v{t[6]}, {v(vC)}, 4, v{t[5]}')
        a(f'v_lshl_add_u32 v{t[7]}, v{t[4]}, 6, v{t[5]}')
        a(f'v_add_u32 v{t[7]}, 4096, v{t[7]}')
        a(f'v_lshl_add_u32 v{t[8]}, v{t[1]}, 4, v{t[7]}')
        a(f'v_cmp_eq_u32 vcc, v{t[0]}, v{t[4]}')
        a(f'v_cndmask_b32 v{t[8]}, v{t[2]}, v{t[8]}, vcc')
        a(f'v_add_u32 v{t[7]}, 32, v{t[7]}')
        a(f'v_cmp_eq_u32 vcc, 0, {v(vC)}')
        a(f'v_cndmask_b32 v{t[8]}, v{t[8]}, v{t[7]}, vcc')
        a(f'v_cmp_gt_u32 vcc, 32, {v(vL)}')
        a(f'v_cndmask_b32 {v(vD0)}, v{t[8]}, v{t[6]}, vcc')
        a.label(f'{L}_sc2')
    gx = lambda k: (GX if k >= 2 else 80) + 2 * (k & 1)
    def gate_read(k):
        sl = k % 4
        a(f'ds_read_b64 {v(gx(k),2)}, {v(vGA + (sl >> 1))} offset:{(sl & 1) * SLOT}')
    def gate_acc(k):
        x = gx(k); t = 58
        for d in range(2):
            a(f'v_lshlrev_b32 {v(t+4*d)}, 16, {v(x+d)}')
            a(f'v_and_b32 {v(t+4*d+1)}, 0xffff0000, {v(x+d)}')
            a(f'v_lshlrev_b32 {v(t+4*d+2)}, 16, {v(GW+2*k+d)}')
            a(f'v_and_b32 {v(t+4*d+3)}, 0xffff0000, {v(GW+2*k+d)}')
        for d in range(2): add2(t+4*d, t+4*d, t+4*d+2, 'mul')
        for d in range(2): a(f'v_cvt_pk_bf16_f32 {v(t+4*d+2)}, {v(t+4*d)}, {v(t+4*d+1)}')
        for d in range(2):
            a(f'v_lshlrev_b32 {v(t+4*d)}, 16, {v(t+4*d+2)}')
            a(f'v_and_b32 {v(t+4*d+1)}, 0xffff0000, {v(t+4*d+2)}')
        for d in range(2): add2(GA+2*d, GA+2*d, t+4*d, 'add')
    vS = 12
    consts()
    sd(2)
    sd(3)
    issue(1)
    sd(11)
    if DBG:
        st = Stamper(a, 0, 'light'); st.keep = ()
    vS = 12
    srd(a, rWS, P['ws'], WS_SIZE)
    a('v_mov_b32 v30, 0')
    for k in range(9):
        vwait(k)
        a('s_barrier')
        if k: gate_read(k - 1)
        if k == 8: gate_read(8)
        def mid():
            for j in (2 * k, 2 * k + 1):
                if j < 9: vm(f'global_load_dwordx2 {v(GW+2*j,2)}, v12, {s(P["gw"],2)} offset:{128*j}', f'gw{j}')
            if k == 5: vm(f'global_load_dwordx2 {v(vTAG,2)}, v30, {s(P["dbg"],2)} sc1', 'tag')
            if k >= 2:
                a('s_waitcnt lgkmcnt(0)')
                for j in ([0, 1] if k == 2 else [7, 8] if k == 8 else [k - 1]):
                    assert f'gw{j}' not in fifo
                    gate_acc(j)
        if k <= 6: issue(k + 2, mid)
        else: issue_q(k - 7, mid)
    st(4)
    a('s_barrier')
    st(5)
    a(f's_mov_b32 {s(sT2)}, {WS_F:#x}')
    vF = 18
    vm(f'buffer_load_dwordx2 {v(vF,2)}, {v(vFL)}, {s(rWS,4)}, {s(sT2)} offen sc1', 'fl')
    issue_q(2)
    for i in range(4): a(f'v_mov_b32 {v(vS+i)}, 0')
    a(f's_lshl_b32 {s(sT0)}, {s(sW)}, 11')
    a(f'v_add_u32 v31, {s(sT0)}, {v(vL16)}')
    a(f'ds_write_b128 v31, {v(vS,4)} offset:{FRG}')
    a(f'ds_write_b128 v31, {v(vS,4)} offset:{FRG + 1024}')
    vwait('q0', ' lgkmcnt(0)')
    st(7)
    a('s_barrier')
    st(8)
    S0 = 64
    for w in range(4):
        a(f'ds_read_b128 {v(S0+6*w,4)}, {v(vRD)} offset:{RED + 6144*w}')
        a(f'ds_read_b64 {v(S0+6*w+4,2)}, {v(vRH)} offset:{RED + 6144*w + 4096}')
    a('s_waitcnt lgkmcnt(4)')
    for p in range(3): add2(S0+2*p, S0+2*p, S0+6+2*p, 'add')
    a('s_waitcnt lgkmcnt(0)')
    for p in range(3): add2(S0+12+2*p, S0+12+2*p, S0+18+2*p, 'add')
    for p in range(3): add2(S0+2*p, S0+2*p, S0+12+2*p, 'add')
    a(f's_mov_b32 {s(sI)}, 0')
    vwait('fl')
    a.label(f'{L}_fl')
    a(f'v_cmp_ne_u64 vcc, {v(vF,2)}, {v(vTAG,2)}')
    a(f'v_cmp_eq_u32 {s(62,2)}, 0, {v(vTAG)}')
    a(f's_or_b64 vcc, vcc, {s(62,2)}')
    a(f's_cbranch_scc0 {L}_flok')
    a(f'global_load_dwordx2 {v(vTAG,2)}, v30, {s(P["dbg"],2)} sc1')
    a(f'buffer_load_dwordx2 {v(vF,2)}, {v(vFL)}, {s(rWS,4)}, {s(sT2)} offen sc1')
    a(f's_add_u32 {s(sI)}, {s(sI)}, 1')
    a(f's_cmp_lt_u32 {s(sI)}, {SPIN}')
    a('s_waitcnt vmcnt(0)')
    a(f's_cbranch_scc1 {L}_fl')
    a.label(f'{L}_flok')
    vm(f'buffer_store_dwordx4 {v(S0,4)}, {v(vL16)}, {s(rWS,4)}, {s(sPS)} offen sc1', 'p')
    vm(f'buffer_store_dwordx2 {v(S0+4,2)}, {v(vH8)}, {s(rWS,4)}, {s(sPS)} offen offset:1024 sc1', 'p')
    st(2)
    vwait('q2')
    st(9)
    a('s_barrier')
    st(10)
    st(3)
    a(f's_mul_i32 {s(sT0)}, {s(sHG)}, {16*6144}')
    a(f's_mul_i32 {s(sT1)}, {s(sW)}, 1536')
    a(f's_add_u32 {s(sT0)}, {s(sT0)}, {s(sT1)}')
    a(f's_add_u32 {s(sT0)}, {s(sT0)}, {WS_P:#x}')
    a(f'v_add_u32 v31, 6144, {v(vL16)}')
    PA = 96
    def pload(p, fn):
        d = PA + 12 * p
        a(f's_add_u32 {s(sT1)}, {s(sT0)}, {12288*p}')
        fn(f'buffer_load_dwordx4 {v(d,4)}, {v(vL16)}, {s(rWS,4)}, {s(sT1)} offen sc1')
        fn(f'buffer_load_dwordx4 {v(d+4,4)}, v31, {s(rWS,4)}, {s(sT1)} offen sc1')
        fn(f'buffer_load_dwordx4 {v(d+8,4)}, {v(vHP)}, {s(rWS,4)}, {s(sT1)} offen offset:1024 sc1')
    def pcheck(p):
        d = PA + 12 * p
        for i in range(4): a(f'v_max3_u32 v{64+i}, {v(d+3*i)}, {v(d+3*i+1)}, {v(d+3*i+2)}')
        a('v_max3_u32 v64, v64, v65, v66')
        a('v_max_u32 v64, v64, v67')
        a('v_cmp_eq_u32 vcc, -1, v64')
    for p in range(8): pload(p, lambda t: vm(t, ('p', p)))
    if tail:
        a(f'v_lshrrev_b32 v13, 3, {v(vL)}')
        a(f'v_and_b32 v14, 7, {v(vL)}')
        a('v_lshlrev_b32 v13, 7, v13')
        a(f'v_lshl_add_u32 {v(vFL)}, v14, 3, v13')
        a(f's_lshl_b32 {s(sOM)}, {s(sRB)}, 10')
        a(f's_add_u32 {s(sOM)}, {s(sOM)}, {WS_F + 128*128:#x}')
        vm(f'buffer_load_dwordx2 {v(vF,2)}, {v(vFL)}, {s(rWS,4)}, {s(sOM)} offen sc1', 'of')
    add2(GA, GA, GA+2, 'add')
    a(f'v_add_f32 {v(GA)}, {v(GA)}, {v(GA+1)}')
    for sh in (1, 2, 4, 8): a(f'v_add_f32_dpp {v(GA)}, {v(GA)}, {v(GA)} row_ror:{sh} row_mask:0xf bank_mask:0xf')
    g = v(GA)
    a(f'v_cvt_pk_bf16_f32 {g}, {g}, {g}')
    a(f'v_lshlrev_b32 {g}, 16, {g}')
    a(f'v_mul_f32 {g}, {f32(-math.log2(math.e))}, {g}')
    a(f'v_exp_f32 {g}, {g}')
    a(f'v_add_f32 {g}, 1.0, {g}')
    a(f'v_rcp_f32 {g}, {g}')
    a(f'v_cvt_pk_bf16_f32 {g}, {g}, {g}')
    a(f'v_lshlrev_b32 {g}, 16, {g}')
    a(f's_mov_b32 {s(sT1)}, {WS_G:#x}')
    vm(f'buffer_store_dword {g}, {v(vGS)}, {s(rWS,4)}, {s(sT1)} offen sc1', 'g')
    a(f's_mov_b32 {s(sI)}, 0')
    st(6)
    for p in range(8):
        d = PA + 12 * p
        vwait(('p', p))
        pcheck(p)
        a(f's_mov_b32 {s(sP0)}, {p}')
        a(f's_cbranch_vccnz {L}_slow')
        a.label(f'{L}_ok{p}')
        for q in range(2): add2(d+2*q, d+2*q, d+4+2*q, 'add')
        if p:
            for q in range(2): add2(PA+8+2*q, PA+8+2*q, d+8+2*q, 'add')
            for q in range(2): add2(PA+2*q, PA+2*q, d+2*q, 'add')
    for q in range(2): a(f'v_permlane32_swap_b32 {v(PA+8+q)}, {v(PA+10+q)}')
    for q in range(2): a(f'v_cvt_pk_bf16_f32 {v(PA+q)}, {v(PA+2*q)}, {v(PA+2*q+1)}')
    add2(PA+8, PA+8, PA+10, 'add')
    a(f'ds_write_b64 {v(vRD)}, {v(PA,2)} offset:{FRG}')
    a(f'v_cvt_pk_bf16_f32 {v(PA+2)}, {v(PA+8)}, {v(PA+9)}')
    a(f'ds_write_b32 {v(vD0)}, {v(PA+2)}')
    if tail:
        a(f's_mov_b32 {s(sOR)}, 0')
        vwait('of')
        a.label(f'{L}_of')
        a(f'v_cmp_ne_u64 vcc, {v(vF,2)}, {v(vTAG,2)}')
        a(f's_cbranch_vccz {L}_ofok')
        a(f'buffer_load_dwordx2 {v(vF,2)}, {v(vFL)}, {s(rWS,4)}, {s(sOM)} offen sc1')
        a(f's_add_u32 {s(sOR)}, {s(sOR)}, 1')
        a(f's_cmp_lt_u32 {s(sOR)}, {SPIN}')
        a('s_waitcnt vmcnt(0)')
        a(f's_cbranch_scc1 {L}_of')
        a.label(f'{L}_ofok')
        st.value(11, s(sOR))
    a('s_waitcnt lgkmcnt(0)')
    st(12)
    if not DBG: st.value(13, s(sI))
    a('s_barrier')
    if tail: tail()
    else:
        st.flush()
        a('s_endpgm')
    a.label(f'{L}_slow')
    a('s_waitcnt vmcnt(0)')
    a(f's_mov_b32 {s(sT2)}, 0')
    for p in range(8):
        pcheck(p)
        a(f's_cbranch_vccz {L}_sl{p}')
        pload(p, a)
        a(f's_mov_b32 {s(sT2)}, 1')
        a.label(f'{L}_sl{p}')
    a(f's_add_u32 {s(sI)}, {s(sI)}, 1')
    a(f's_cmp_lt_u32 {s(sI)}, {SPIN}')
    a(f's_cselect_b32 {s(sT2)}, {s(sT2)}, 0')
    a(f's_cmp_lg_u32 {s(sT2)}, 0')
    a(f's_cbranch_scc1 {L}_slow')
    a('s_waitcnt vmcnt(0)')
    for p in range(7):
        a(f's_cmp_eq_u32 {s(sP0)}, {p}')
        a(f's_cbranch_scc1 {L}_ok{p}')
    a(f's_branch {L}_ok7')
```

```python
from common import *
import gq
def entry(a, st, ntot, cpf=True):
    st(0)
    a('s_load_dwordx16 s[4:19], s[0:1], 0')
    a('s_load_dwordx8 s[20:27], s[0:1], 64')
    a('s_load_dwordx4 s[28:31], s[0:1], 96')
    a('v_lshrrev_b32 v2, 6, v0')
    a('v_and_b32 v1, 63, v0')
    a(f's_cmp_ge_u32 s2, {ntot}')
    a('s_cbranch_scc1 k_end')
    a(f'v_readfirstlane_b32 {s(sW)}, v2')
    if cpf:
        a(f's_cmp_lg_u32 {s(sW)}, 3')
        a('s_cbranch_scc1 k_nocp')
        a('s_getpc_b64 s[46:47]')
        a.label('k_pc')
        a('s_bfe_u32 s45, s2, 0x30003')
        a('s_lshl_b32 s45, s45, 13')
        a('v_lshl_add_u32 v2, v1, 7, s45')
        a('v_min_u32 v2, k_end-k_pc, v2')
        a('global_load_dword v255, v2, s[46:47]')
        a.label('k_nocp')
    st.init()
```

```python
from common import *
OWO = 40960
OB = OWO + 576 * 192
sT0, sT1, sT2, sI = 47, 48, 49, 50
sOR2, sONB, sOS, sSO, sRT, sP0, sOA = 56, 57, 58, 59, 60, 61, 62
vL, vTAG = 1, 28
WS_FB = WS_F + 128 * 128
WS_FD = WS_FU
L = 'o'

def done_flag(a, sid, vz):
    a(f's_lshr_b32 {s(sT0)}, {sid}, 2')
    a(f's_lshl_b32 {s(sT0)}, {s(sT0)}, 7')
    a(f's_and_b32 {s(sT1)}, {sid}, 3')
    a(f's_lshl3_add_u32 {s(sT0)}, {s(sT1)}, {s(sT0)}')
    a(f's_add_u32 {s(sT0)}, {s(sT0)}, {WS_FD:#x}')
    a(f'buffer_store_dwordx2 {v(vTAG,2)}, {v(vz)}, {s(rWS,4)}, {s(sT0)} offen sc1')

def gen_comp(a, st, OUTF=''):
    a.label(f'{L}_comp')
    st(0)
    srd(a, rWO, P['wo'], WOB)
    a(f's_mov_b32 {s(sT0)}, 0x5556')
    for i in range(3):
        a(f'v_add_u32 v3, {64*i}, {v(vL)}')
        a('v_lshrrev_b32 v4, 2, v3')
        a(f'v_mul_u32_u24 v5, {s(sT0)}, v4')
        a('v_lshrrev_b32 v5, 16, v5')
        a('v_mul_u32_u24 v6, 12, v5')
        a('v_sub_u32 v6, v3, v6')
        a('v_lshrrev_b32 v7, 1, v5')
        a('v_and_b32 v7, 2, v7')
        a('v_xor_b32 v6, v6, v7')
        a('v_mul_u32_u24 v5, 1152, v5')
        a(f'v_lshl_add_u32 {v(20+i)}, v6, 4, v5')
        if i: a(f'v_subrev_u32 {v(20+i)}, {1024*i}, {v(20+i)}')
    a(f's_mul_i32 {s(sSO)}, {s(sW)}, {16*1152}')
    a(f's_mul_i32 {s(sT1)}, {s(sONB)}, 192')
    a(f's_add_u32 {s(sSO)}, {s(sSO)}, {s(sT1)}')
    a(f's_mul_i32 {s(sT0)}, {s(sW)}, {16*192}')
    for j in range(9):
        a(f's_add_u32 m0, {s(sT0)}, {OWO + j*64*192}')
        a(f's_add_u32 {s(sT2)}, {s(sSO)}, {j*64*1152}')
        for i in range(3): a(f'buffer_load_dwordx4 {v(20+i)}, {s(rWO,4)}, {s(sT2)} offen offset:{1024*i} lds')
    st(1)
    a(f's_lshl2_add_u32 {s(sRT)}, {s(sOR2)}, {s(sW)}')
    a(f's_lshl_b32 {s(sT0)}, {s(sRT)}, 7')
    a(f's_add_u32 {s(sT0)}, {s(sT0)}, {128*128}')
    a(f'v_lshl_add_u32 v2, {v(vL)}, 3, {s(sT0)}')
    a(f's_and_b32 {s(sT0)}, {s(sRT)}, 7')
    a(f's_lshr_b32 {s(sT1)}, {s(sRT)}, 3')
    a(f's_lshl4_add_u32 {s(sT0)}, {s(sT0)}, {s(sT1)}')
    a(f's_lshl_b32 {s(sT0)}, {s(sT0)}, 7')
    a(f'v_mov_b32 v3, {s(sT0)}')
    a(f'v_cmp_gt_u32 vcc, 8, {v(vL)}')
    a('v_cndmask_b32 v24, v3, v2, vcc')
    a(f's_mov_b32 {s(sT2)}, {WS_F:#x}')
    a(f'buffer_load_dwordx2 v[26:27], v24, {s(rWS,4)}, {s(sT2)} offen sc1')
    srd(a, rOUT, P['out'], XB)
    vO, vACC, vA = 64, 136, 160
    NSLOT = 8
    vP, vQ, vPR, vQR, vG, vOMG, vST, vBA, vL16, vL4, vGA, vRP = 3, 4, 5, 6, 7, 8, 9, 10, 11, 12, 13, 23
    a(f's_mul_i32 {s(sOA)}, {s(sRT)}, {18*1024}')
    a(f'v_lshlrev_b32 {v(vL16)}, 4, {v(vL)}')
    a(f'v_lshlrev_b32 {v(vL4)}, 2, {v(vL)}')
    a(f'v_and_b32 v2, 15, {v(vL)}')
    a(f'v_lshlrev_b32 {v(vGA)}, 2, v2')
    a(f'v_and_b32 v14, 7, {v(vL)}')
    a(f'v_lshlrev_b32 {v(vRP)}, 8, v14')
    a(f'v_lshrrev_b32 v14, 4, {v(vL)}')
    a(f'v_lshrrev_b32 v15, 2, {v(vL)}')
    a(f'v_and_b32 v16, 3, {v(vL)}')
    a('v_mul_u32_u24 v17, 192, v15')
    a('v_lshl_add_u32 v17, v16, 3, v17')
    a(f'v_add_u32 v17, {OWO}, v17')
    a('v_and_b32 v18, 1, v14')
    a(f'v_lshl_add_u32 {v(vP)}, v18, 5, v17')
    a('v_xor_b32 v18, 1, v18')
    a(f'v_lshl_add_u32 {v(vQ)}, v18, 5, v17')
    a(f'v_bfe_u32 v18, {v(vL)}, 3, 1')
    a('v_mul_u32_u24 v19, 72, v18')
    a(f'v_bfe_u32 v18, {v(vL)}, 2, 1')
    a('v_add_u32 v19, v19, v18')
    a(f'v_bfe_u32 v18, {v(vL)}, 4, 1')
    a('v_lshl_add_u32 v19, v18, 1, v19')
    a(f'v_lshrrev_b32 v18, 5, {v(vL)}')
    a('v_mul_u32_u24 v17, 36, v18')
    a('v_add3_u32 v19, v19, v17, 16')
    a('v_mul_u32_u24 v19, 192, v19')
    a('v_lshl_add_u32 v19, v16, 3, v19')
    a(f'v_add_u32 v19, {OWO}, v19')
    a(f'v_lshl_add_u32 {v(vPR)}, v18, 5, v19')
    a('v_xor_b32 v18, 1, v18')
    a(f'v_lshl_add_u32 {v(vQR)}, v18, 5, v19')
    a('v_lshlrev_b32 v19, 7, v15')
    a('v_lshl_add_u32 v19, v16, 3, v19')
    a(f's_lshl_b32 {s(sT1)}, {s(sW)}, 5')
    a(f's_add_u32 {s(sT1)}, {s(sT1)}, {OB}')
    a(f'v_add_u32 {v(vBA)}, {s(sT1)}, v19')
    a('v_mul_u32_u24 v19, 1152, v2')
    a(f'v_bfe_u32 v18, {v(vL)}, 4, 1')
    a('v_lshl_add_u32 v19, v18, 5, v19')
    a(f'v_lshrrev_b32 v18, 5, {v(vL)}')
    a(f'v_lshl_add_u32 {v(vST)}, v18, 4, v19')
    a(f's_mul_i32 {s(sSO)}, {s(sRT)}, {16*1152}')
    a(f's_mul_i32 {s(sT1)}, {s(sONB)}, 192')
    a(f's_add_u32 {s(sSO)}, {s(sSO)}, {s(sT1)}')
    a('s_waitcnt vmcnt(1)')
    st(2)
    a('s_barrier')
    a(f's_mov_b32 {s(sI)}, 0')
    a.label(f'{L}_fl')
    a('s_waitcnt vmcnt(0)')
    a(f'v_cmp_ne_u64 vcc, v[26:27], {v(vTAG,2)}')
    a(f's_cbranch_vccz {L}_flok')
    a(f'buffer_load_dwordx2 v[26:27], v24, {s(rWS,4)}, {s(sT2)} offen sc1')
    a(f's_add_u32 {s(sI)}, {s(sI)}, 1')
    a(f's_cmp_lt_u32 {s(sI)}, {SPIN}')
    a(f's_cbranch_scc1 {L}_fl')
    a.label(f'{L}_flok')
    a(f's_add_u32 {s(sT2)}, {s(sOA)}, {16*1024}')
    a(f's_mov_b32 {s(sI)}, 0')
    a.label(f'{L}_rp')
    a(f'buffer_load_dword v25, {v(vRP)}, {s(rWS,4)}, {s(sT2)} offen offset:252 sc1')
    a(f's_add_u32 {s(sI)}, {s(sI)}, 1')
    a('s_waitcnt vmcnt(0)')
    a('v_cmp_eq_u32 vcc, -1, v25')
    a(f's_cbranch_vccz {L}_go')
    a(f's_cmp_lt_u32 {s(sI)}, {SPIN}')
    a(f's_cbranch_scc1 {L}_rp')
    a.label(f'{L}_go')
    st(3)
    st.value(9, s(sI))
    def oload(c):
        if c < 16:
            a(f's_add_u32 {s(sT0)}, {s(sOA)}, {(c // 4) * 4096}') if (c % 4 == 0 or oload.force) else None
            a(f'buffer_load_dwordx4 {v(vO+4*c,4)}, {v(vL16)}, {s(rWS,4)}, {s(sT0)} offen offset:{(c%4)*1024} sc1')
        elif c < 18:
            for h in range(4): a(f'buffer_load_dword {v(vO+4*c+h)}, {v(vL4)}, {s(rWS,4)}, {s(sT2)} offen offset:{(4*(c-16)+h)*256} sc1')
        else:
            a(f's_lshl_b32 {s(sT0)}, {s(sRT)}, 6')
            a(f's_add_u32 {s(sT0)}, {s(sT0)}, {WS_G:#x}')
            a(f'buffer_load_dword {v(vG)}, {v(vGA)}, {s(rWS,4)}, {s(sT0)} offen sc1')
    oload.force = False
    for c in range(19): oload(c)
    later = lambda c: sum(1 if (k < 16 or k == 18) else 4 for k in range(c + 1, 19))
    def ocheck(c):
        if c < 18:
            d = vO + 4 * c
            a(f'v_max3_u32 v25, {v(d)}, {v(d+1)}, {v(d+2)}')
            a(f'v_max_u32 v25, v25, {v(d+3)}')
            a('v_cmp_eq_u32 vcc, -1, v25')
        else: a(f'v_cmp_eq_u32 vcc, -1, {v(vG)}')
    HALF = 288 * 192
    shifted = {'m': False, 'r': False}
    def issue_reads(i):
        c, m = divmod(i, 6)
        slot = vA + 4 * (i % NSLOT)
        out = []
        for rd in range(2):
            if c < 16:
                row = 36 * c + 20 * rd
                par = (row // 4) & 1
                reg = vP if ((m & 1) ^ par) == 0 else vQ
                key, regs = 'm', (vP, vQ)
            else:
                row = 288 * (c - 16) + 144 * rd
                reg = vPR if (m & 1) == 0 else vQR
                key, regs = 'r', (vPR, vQR)
            off = row * 192 + (m >> 1) * 64
            if off >= HALF and not shifted[key]:
                for r in regs: a(f'v_add_u32 {v(r)}, {HALF}, {v(r)}')
                shifted[key] = True
            if shifted[key]: off -= HALF
            assert 0 <= off < 65536
            a(f'ds_read_b64_tr_b16 {v(slot+2*rd,2)}, {v(reg)} offset:{off}')
    LA, N = 7, 108
    issued = 0
    def ensure(upto):
        nonlocal issued
        while issued < min(upto, N):
            issue_reads(issued); issued += 1
    ensure(LA)
    a(f's_mov_b32 {s(sI)}, 0')
    for i in range(N):
        c, m = divmod(i, 6)
        if m == 0:
            a(f's_waitcnt vmcnt({later(c)})')
            ocheck(c)
            a(f's_mov_b32 {s(sP0)}, {c}')
            a(f's_cbranch_vccnz {L}_slow ;nopad')
            a.label(f'{L}_ok{c}')
        if i % 2 == 0: a(f's_waitcnt lgkmcnt({2*(issued - i - 2)})')
        slot = vA + 4 * (i % NSLOT)
        a(f'v_mfma_f32_16x16x32_bf16 {v(vACC+4*m,4)}, {v(slot,4)}, {v(vO+4*c,4)}, {v(vACC+4*m,4) if c else 0}')
        ensure(i + 1 + LA)
    a('s_waitcnt vmcnt(0)')
    ocheck(18)
    a(f's_mov_b32 {s(sP0)}, 18')
    a(f's_cbranch_vccnz {L}_slow ;nopad')
    a.label(f'{L}_ok18')
    st(4)
    st.value(10, s(sI))
    a('s_barrier')
    st(5)
    vB = 64
    for m in range(6): a(f'ds_read_b64_tr_b16 {v(vB+2*m,2)}, {v(vBA)} offset:{m*16*128}')
    a(f'v_sub_f32 {v(vOMG)}, 1.0, {v(vG)}')
    a(f'v_cvt_pk_bf16_f32 {v(vOMG)}, {v(vOMG)}, {v(vOMG)}')
    a(f'v_lshlrev_b32 {v(vOMG)}, 16, {v(vOMG)}')
    for i in range(12): a(f'v_pk_mul_f32 {v(vACC+2*i,2)}, {v(vACC+2*i,2)}, {v(vG-1,2)} op_sel:[0,1] op_sel_hi:[1,1]')
    vT, vR = 80, 100
    for m in range(6):
        a(f's_waitcnt lgkmcnt({5-m})')
        t = vT + 4 * (m & 1)
        a(f'v_lshlrev_b32 {v(t)}, 16, {v(vB+2*m)}')
        a(f'v_and_b32 {v(t+1)}, 0xffff0000, {v(vB+2*m)}')
        a(f'v_lshlrev_b32 {v(t+2)}, 16, {v(vB+2*m+1)}')
        a(f'v_and_b32 {v(t+3)}, 0xffff0000, {v(vB+2*m+1)}')
        for h in range(2): a(f'v_pk_fma_f32 {v(t+2*h,2)}, {v(t+2*h,2)}, {v(vOMG,2)}, {v(vACC+4*m+2*h,2)} op_sel:[0,0,0] op_sel_hi:[1,0,1]')
        o = vR + 4 * (m >> 1) + 2 * (m & 1)
        a(f'v_cvt_pk_bf16_f32 {v(o)}, {v(t)}, {v(t+1)}')
        a(f'v_cvt_pk_bf16_f32 {v(o+1)}, {v(t+2)}, {v(t+3)}')
        if m & 1:
            o = vR + 4 * (m >> 1)
            a(f'v_permlane16_swap_b32 {v(o)}, {v(o+2)}')
            a(f'v_permlane16_swap_b32 {v(o+1)}, {v(o+3)}')
            a(f'buffer_store_dwordx4 {v(o,4)}, {v(vST)}, {s(rOUT,4)}, {s(sSO)} offen offset:{(m>>1)*64} {OUTF}')
    st(6)
    if st.enabled: a('s_waitcnt vmcnt(0)')
    st(7)
    st.flush()
    a('s_endpgm')
    a.label(f'{L}_slow')
    a('s_waitcnt vmcnt(0)')
    a(f's_mov_b32 {s(sT1)}, 0')
    oload.force = True
    for c in range(19):
        ocheck(c)
        a(f's_cbranch_vccz {L}_sl{c}')
        oload(c)
        a(f's_mov_b32 {s(sT1)}, 1')
        a.label(f'{L}_sl{c}')
    a(f's_add_u32 {s(sI)}, {s(sI)}, 1')
    a(f's_cmp_lt_u32 {s(sI)}, {SPIN}')
    a(f's_cselect_b32 {s(sT1)}, {s(sT1)}, 0')
    a(f's_cmp_lg_u32 {s(sT1)}, 0')
    a(f's_cbranch_scc1 {L}_slow')
    a('s_waitcnt vmcnt(0)')
    for c in range(18):
        a(f's_cmp_eq_u32 {s(sP0)}, {c}')
        a(f's_cbranch_scc1 {L}_ok{c}')
    a(f's_branch {L}_ok18')

def gen_help(a, st):
    a.label(f'{L}_help')
    st(0)
    a(f'v_lshrrev_b32 v3, 1, {v(vL)}')
    a(f'v_and_b32 v4, 1, {v(vL)}')
    a('v_lshlrev_b32 v3, 7, v3')
    a('v_lshl_add_u32 v5, v4, 4, v3')
    a(f'v_lshrrev_b32 v3, 3, {v(vL)}')
    a(f'v_and_b32 v4, 7, {v(vL)}')
    a('v_lshlrev_b32 v3, 12, v3')
    a('v_lshl_add_u32 v13, v4, 4, v3')
    a('v_mov_b32 v6, 0')
    a(f's_lshl2_add_u32 {s(sSO)}, {s(sONB)}, {s(sW)}')
    a(f's_mul_i32 {s(sSO)}, {s(sSO)}, {24*4096}')
    a(f's_lshl_b32 {s(sT0)}, {s(sOR2)}, 7')
    a(f's_add_u32 {s(sSO)}, {s(sSO)}, {s(sT0)}')
    a(f's_add_u32 {s(sSO)}, {s(sSO)}, {WS_B:#x}')
    a(f's_mul_i32 {s(sRT)}, {s(sW)}, 3072')
    a('s_waitcnt vmcnt(0)')
    st(1)
    a('s_barrier')
    a(f's_lshr_b32 {s(sT0)}, {s(sOS)}, 31')
    a(f's_or_b32 {s(sT0)}, {s(sT0)}, {s(sW)}')
    a(f's_cbranch_scc1 {L}_nf')
    a('s_mov_b64 exec, 1')
    done_flag(a, s(sOS), 6)
    a('s_mov_b64 exec, -1')
    a.label(f'{L}_nf')
    a(f's_mov_b32 {s(sT2)}, {WS_FD:#x}')
    a(f's_mov_b32 {s(sI)}, 0')
    a.label(f'{L}_bp')
    a(f'buffer_load_dwordx4 v[8:11], v5, {s(rWS,4)}, {s(sT2)} offen sc1')
    a(f's_add_u32 {s(sI)}, {s(sI)}, 1')
    a('s_waitcnt vmcnt(0)')
    a(f'v_cmp_ne_u64 vcc, v[8:9], {v(vTAG,2)}')
    a(f'v_cmp_ne_u64 {s(62,2)}, v[10:11], {v(vTAG,2)}')
    a(f's_or_b64 vcc, vcc, {s(62,2)}')
    a(f's_cbranch_scc0 {L}_bgo')
    a('s_sleep 4')
    a(f's_cmp_lt_u32 {s(sI)}, {SPIN}')
    a(f's_cbranch_scc1 {L}_bp')
    a.label(f'{L}_bgo')
    st(3)
    st.value(9, s(sI))
    for i in range(3):
        a(f's_add_u32 m0, {s(sRT)}, {OB + 1024*i}')
        a(f's_add_u32 {s(sT0)}, {s(sSO)}, {8*4096*i}')
        a(f'buffer_load_dwordx4 v13, {s(rWS,4)}, {s(sT0)} offen sc1 lds')
    a('s_waitcnt vmcnt(0)')
    st(4)
    a('s_barrier')
    st.flush()
    a('s_endpgm')
```

```python
import sys, os, importlib
from build import *
import gq, kern, oph
ssm = importlib.import_module(os.environ.get('SSM', 'ssm_g'))
MODE = sys.argv[2] if len(sys.argv) > 2 else ''
KW = eval(sys.argv[3]) if len(sys.argv) > 3 else {}
KO = eval(sys.argv[4]) if len(sys.argv) > 4 else {}
def gen(a):
    full = Stamper(a, 0, bool(MODE))
    st = full
    if MODE in ('o', 'light'): st = Stamper(a, 0, 'light')
    so = Shifted(full, 1, MODE == 'o')
    kern.entry(a, st, 256)
    a('s_cmp_ge_u32 s2, 128')
    a('s_cbranch_scc1 k_ssm')
    gq.g_ids(a)
    a(f's_cmp_lt_u32 {s(sW)}, 4')
    a('s_cbranch_scc1 g_comp')
    def ids():
        a(f's_lshr_b32 {s(oph.sOR2)}, {s(gq.sHG)}, 2')
        a(f's_lshl1_add_u32 {s(oph.sOR2)}, {s(gq.sRB)}, {s(oph.sOR2)}')
        a(f's_and_b32 {s(oph.sONB)}, {s(gq.sHG)}, 3')
    def ltail():
        ids()
        a('s_setprio 0')
        a('s_branch o_comp')
    def ctail():
        a('v_mov_b32 v2, 0')
        a(f'global_load_dwordx2 v[28:29], v2, {s(P["dbg"],2)} sc1')
        ids()
        a(f's_mov_b32 {s(oph.sOS)}, -1')
        a('s_branch o_help')
    gq.gen_loader(a, st, tail=ltail)
    a.label('g_comp')
    gq.gen_compute(a, st, tail=ctail)
    a.label('k_ssm')
    a('s_sub_u32 s3, s2, 128')
    def stail():
        a('s_setprio 0')
        a('s_cmp_ge_u32 s3, 64')
        a('s_cbranch_scc1 s_four')
        a('s_waitcnt vmcnt(0)')
        a('s_barrier')
        a(f's_cmp_lg_u32 {s(sW)}, 0')
        a('s_cbranch_scc1 s_end')
        a('s_mov_b64 exec, 1')
        oph.done_flag(a, 's3', 27)
        a.label('s_end')
        so(0)
        full.flush()
        a('s_endpgm')
        a.label('s_four')
        a('s_and_b32 s47, s3, 6')
        a('s_bfe_u32 s48, s3, 0x20003')
        a('s_lshl1_add_u32 s47, s47, s48')
        a('s_and_b32 s48, s3, 1')
        a(f's_lshl1_add_u32 {s(oph.sOR2)}, s47, s48')
        a(f's_bfe_u32 {s(oph.sONB)}, s3, 0x10005')
        a(f's_add_u32 {s(oph.sONB)}, {s(oph.sONB)}, 4')
        a(f's_mov_b32 {s(oph.sOS)}, s3')
        a('s_barrier')
        a(f's_cmp_lt_u32 {s(sW)}, 4')
        a('s_cbranch_scc1 o_comp')
        a(f's_sub_u32 {s(sW)}, {s(sW)}, 4')
    ssm.gen_ssm(a, st, tail=stail, fused=True, **KW)
    oph.gen_help(a, so)
    oph.gen_comp(a, so, **KO)
    a.label('k_end')
    a('s_endpgm')
build([(NAME + '_kernel', gen, 256, 512, gq.G_LDS, 256)], sys.argv[1])
```

```python
from asmlib import *
import math, struct
NAME = 'gated_mix__linear_attn_block__ssm_conv_s4d__prompt'
KA = dict(x=0, wqkv=8, wo=16, u=24, lar=32, aim=40, cr=48, ci=56, ldt=64, dsk=72, gw=80, out=88, dbg=96, ws=104)
WS_O = 0x000000
WS_B = 0x240000
WS_G = 0x480000
WS_P = 0x490000
WS_F = 0x560000
WS_FU = 0x570000
WS_U = 0x700000
WS_T = 0x600000
WS_SIZE = 0x940000
XB = 2048 * 576 * 2
WB = 576 * 1728 * 2
WOB = 576 * 576 * 2
def f32(x): return '0x%08x' % struct.unpack('<I', struct.pack('<f', x))[0]
LOG2E = f32(math.log2(math.e))
P = {k: 4 + o // 4 for k, o in KA.items()}
rX, rW, rWS = 32, 36, 40
rWO, rOUT = 12, 16
sW = 44
SPIN = 0x8000

def srd(a, d, base, nbytes):
    a(f's_mov_b32 {s(d)}, {s(base)}')
    a(f's_and_b32 {s(d+1)}, {s(base+1)}, 0xffff')
    a(f's_mov_b32 {s(d+2)}, {nbytes:#x}')
    a(f's_mov_b32 {s(d+3)}, 0x20000')

def kernel_desc(name, vgpr=256, sgpr=102):
    return f'''.section .rodata,"a"
.p2align 6
.amdhsa_kernel {name}
  .amdhsa_next_free_vgpr {vgpr}
  .amdhsa_next_free_sgpr {sgpr}
  .amdhsa_accum_offset {(vgpr + 3) // 4 * 4}
  .amdhsa_group_segment_fixed_size 0
  .amdhsa_kernarg_size 112
  .amdhsa_user_sgpr_count 2
  .amdhsa_user_sgpr_kernarg_segment_ptr 1
  .amdhsa_system_sgpr_workgroup_id_x 1
.end_amdhsa_kernel
'''

class Stamper:
    def __init__(self, a, region=0, enabled=True):
        self.a = a; self.region = region; self.enabled = enabled; self.keep = (0,)
    def __call__(self, k):
        if not self.enabled: return
        a = self.a
        if self.enabled == 'light' and k not in self.keep: return
        if k == 0:
            a('s_memrealtime s[100:101]')
        a(f's_memtime {s(70+2*k,2)}')
        a('s_waitcnt lgkmcnt(0)')
    def value(self, k, sreg):
        if not self.enabled or (self.enabled == 'light' and k not in self.keep): return
        self.a(f's_add_u32 s{70+2*k}, s70, {sreg}'); self.a(f's_addc_u32 s{71+2*k}, s71, 0')
    def init(self):
        if not self.enabled: return
        for i in range(72, 100, 2): self.a(f's_mov_b64 s[{i}:{i+1}], 0')
    def flush(self):
        if not self.enabled: return
        a = self.a
        a('s_memrealtime s[98:99]')
        a(f's_load_dwordx2 s[66:67], s[0:1], {KA["ws"]}')
        a('s_waitcnt lgkmcnt(0)')
        a('s_mov_b32 s64, s66'); a('s_and_b32 s65, s67, 0xffff'); a(f's_mov_b32 s66, {WS_SIZE:#x}'); a('s_mov_b32 s67, 0x20000')
        a('s_mov_b64 exec, -1')
        a('v_lshrrev_b32 v250, 6, v0')
        a('v_lshlrev_b32 v250, 7, v250')
        a('s_lshl_b32 s68, s2, 10')
        a(f's_add_u32 s68, s68, {WS_T + self.region:#x}')
        a('s_mov_b64 exec, 1')
        for k in range(8):
            for i in range(4): a(f'v_mov_b32 v{252+i}, s{70+4*k+i}')
            a(f'buffer_store_dwordx4 v[252:255], v250, s[64:67], s68 offen offset:{16*k}')
        a('s_waitcnt vmcnt(0)')

COST = lambda t: (8 if t.startswith(TRANS) else 4 if t.startswith(('v_pk_', 'v_cvt_pk', 'v_perm', 'v_mov_b64', 'ds_', 'buffer_', 'v_mfma')) or 'dpp' in t else 2)
class VQ:
    def __init__(self, a): self.a = a; self.q = []
    def add(self, text, after=0): self.q.append((after, text))
    def emit(self, m, budget):
        while self.q and self.q[0][0] <= m and budget > 0:
            t = self.q.pop(0)[1]; self.a(t); budget -= max(COST(t), 4)
    def flush(self):
        for _, t in self.q: self.a(t)
        self.q = []

class Shifted:
    def __init__(self, base, sh, on=True): self.b = base; self.sh = sh; self.on = on; self.enabled = base.enabled
    def __call__(self, k):
        if self.on: self.b(k + self.sh)
    def value(self, k, r):
        if self.on: self.b.value(k + self.sh, r)
    def flush(self): self.b.flush()

PIECE = 9216
WS_FP = WS_F + 128 * 128
def piece_addr(a, dst, tmp, first, n):
    a(f'v_min_u32 {v(tmp)}, {n-1}, v1')
    a(f'v_add_u32 {v(tmp)}, {first}, {v(tmp)}')
    a(f'v_min_u32 {v(tmp)}, 511, {v(tmp)}')
    a(f'v_lshrrev_b32 {v(dst)}, 3, {v(tmp)}')
    a(f'v_mul_u32_u24 {v(dst)}, 64, {v(dst)}')
    a(f'v_lshl_add_u32 {v(dst)}, {v(tmp)}, 3, {v(dst)}')
```

```python
from common import *

G_NWG = 128
SLOT = 40960
G_LDS = 4 * SLOT
OFF_K, OFF_V = 16384, 28672
RED = 0
FRG = 2 * SLOT + 36864
REMD = SLOT
DUM = 576 * 192
TOFF = (0, 40, 72, 112)
sRB, sHG, sT0, sT1, sT2, sI, sXB, sWB, sLX, sLW, sID = range(45, 56)
vL = 1
L = 'g'

def g_ids(a, gid='s2'):
    a(f's_lshr_b32 {s(sT1)}, {gid}, 3')
    a(f's_and_b32 {s(sT0)}, {s(sT1)}, 3')
    a(f's_lshr_b32 {s(sT1)}, {s(sT1)}, 2')
    a(f's_and_b32 {s(sRB)}, {gid}, 6')
    a(f's_lshl1_add_u32 {s(sRB)}, {s(sRB)}, {s(sT0)}')
    a(f's_and_b32 {s(sHG)}, {gid}, 1')
    a(f's_lshl2_add_u32 {s(sHG)}, {s(sHG)}, {s(sT1)}')
    a(f's_lshl4_add_u32 {s(sID)}, {s(sHG)}, {s(sRB)}')

def o_addr(a, sM, sR):
    a(f's_lshl_b32 {s(sR)}, {s(sRB)}, 2')
    a(f's_add_u32 {s(sR)}, {s(sR)}, {s(sW)}')
    a(f's_mul_i32 {s(sR)}, {s(sR)}, {2*18*1024}')
    a(f's_lshl_b32 {s(sM)}, {s(sHG)}, 11')
    a(f's_add_u32 {s(sM)}, {s(sM)}, {s(sR)}')
    a(f's_lshl_b32 {s(sT2)}, {s(sHG)}, 8')
    a(f's_add_u32 {s(sR)}, {s(sR)}, {s(sT2)}')
    a(f's_add_u32 {s(sR)}, {s(sR)}, {16*1024}')

def gen_compute(a, st, tail=None, DBG=False):
    st0 = st
    if DBG:
        st = Stamper(a, 0, 'light'); st.keep = (1,)
    sL2 = 56
    sM1, sM2, sM3, sMG, sMO = 58, 60, 62, 64, 66
    vXA, vWA, vSH, vSQ = 2, 4, 8, 9
    vT = 10
    X0, ACC, RING = 16, 160, 232
    NS = 6
    a(f'v_and_b32 v10, 15, {v(vL)}')
    a(f'v_lshrrev_b32 v11, 4, {v(vL)}')
    a('v_lshrrev_b32 v12, 1, v10')
    a('v_xor_b32 v12, v12, v11')
    a('v_lshlrev_b32 v13, 7, v10')
    a(f's_lshl_b32 {s(sT0)}, {s(sW)}, 12')
    a(f'v_add_u32 v13, {s(sT0)}, v13')
    a(f'v_lshl_add_u32 {v(vXA)}, v12, 4, v13')
    a(f'v_xor_b32 {v(vXA+1)}, 64, {v(vXA)}')
    a(f'v_bfe_u32 v12, {v(vL)}, 2, 2')
    a('v_lshl_add_u32 v12, v11, 3, v12')
    a('v_mul_u32_u24 v12, 192, v12')
    a(f'v_and_b32 v13, 3, {v(vL)}')
    a('v_and_b32 v14, 1, v11')
    a('v_lshlrev_b32 v14, 5, v14')
    a(f's_and_b32 {s(sT0)}, {s(sHG)}, 3')
    a(f's_lshl_b32 {s(sT0)}, {s(sT0)}, 4')
    a(f'v_lshl_add_u32 v15, v13, 3, {s(sT0)}')
    for h in range(4):
        a(f'v_add_u32 v10, {TOFF[h]}, v15')
        a('v_xor_b32 v10, v10, v14')
        a(f'v_add_u32 {v(vWA+h)}, v10, v12')
    a('v_and_b32 v10, 1, v13')
    a('v_mul_u32_u24 v10, 72, v10')
    a(f'v_add3_u32 v10, v10, {s(sT0)}, 32')
    a('v_xor_b32 v10, v10, v14')
    a('v_add_u32 v10, v10, v12')
    a('v_lshrrev_b32 v13, 1, v13')
    a(f'v_mul_u32_u24 {v(vSQ)}, {OFF_V - OFF_K}, v13')
    a(f'v_add_u32 {v(vSH)}, v10, {v(vSQ)}')
    a(f's_mov_b32 {s(sL2)}, {LOG2E}')
    a(f's_mov_b32 {s(sL2+1)}, {LOG2E}')
    def mask(sreg, pred):
        m = sum(1 << l for l in range(64) if pred(l))
        a(f's_mov_b32 {s(sreg)}, {m & 0xffffffff:#x}')
        a(f's_mov_b32 {s(sreg+1)}, {m >> 32:#x}')
    owner = lambda c: c if c < 4 else ((c - 8) >> 1 if c >= 8 else 0)
    mask(sM1, lambda l: owner(l & 15) == 1); mask(sM2, lambda l: owner(l & 15) == 2); mask(sM3, lambda l: owner(l & 15) == 3)
    mask(sMG, lambda l: (l >> 4) == 1); mask(sMO, lambda l: (l & 15) < 8)
    addr_regs = [vXA, vXA + 1, vWA, vWA + 1, vWA + 2, vWA + 3, vSH]
    a('s_waitcnt lgkmcnt(0)')
    srd(a, rWS, P['ws'], WS_SIZE)
    a('s_waitcnt vmcnt(0)')
    st(1)

    class Pipe:
        def __init__(self): self.fifo = []
        def issue(self, text, tag): a(text); self.fifo.append(tag)
        def wait(self, tags):
            idx = max([i for i, t in enumerate(self.fifo) if t in tags], default=-1)
            if idx < 0: return
            n = len(self.fifo) - idx - 1
            assert n <= 15
            a(f's_waitcnt lgkmcnt({n})'); self.fifo = self.fifo[idx + 1:]
        def drain(self):
            a('s_waitcnt lgkmcnt(0)'); self.fifo = []
    PP = Pipe()
    cur_slot = [0]
    def move_slot(new, regs):
        d = (new - cur_slot[0]) * SLOT
        cur_slot[0] = new
        if d == 0: return
        for r in regs:
            if d > 0: a(f'v_add_u32 {v(r)}, {d}, {v(r)}')
            else: a(f'v_subrev_u32 {v(r)}, {-d}, {v(r)}')

    def run_phase(N, NS, loads_of, tags_of, mfmas_of, stage_of, enter_stage, DELAY=2, extra=None, pair=False):
        q = [(n, t, tag) for n in range(N) for (t, tag) in loads_of(n)]
        stage = [None]; hold = [0]; mc = 0
        def pump(k, limit, force=False):
            while q and k > 0 and q[0][0] <= limit:
                sg = stage_of(q[0][0])
                if sg != stage[0]:
                    if not force: return
                    enter_stage(sg); stage[0] = sg; hold[0] = 0
                n, t, tag = q.pop(0)
                PP.issue(t() if callable(t) else t, tag); k -= 1
        pump(99, NS - 2, True)
        for n in range(N):
            pump(99, n, True)
            tg = set(tags_of(n))
            if pair and n + 1 < N and tg & set(PP.fifo) and (not q or q[0][0] > n + 3): tg |= set(tags_of(n + 1))
            PP.wait(tg)
            for m in mfmas_of(n):
                a(m); mc += 1
                backlog = sum(1 for x in q if x[0] <= n + NS - 2)
                pump(2 if backlog > 1 else 1, n + NS - 1)
                if extra: extra(mc)
            if q and stage_of(q[0][0]) != stage[0] and q[0][0] <= n + NS - 1:
                hold[0] += 1
                if hold[0] > DELAY: pump(1, n + NS - 1, True)

    def phi_ops(pairs, tmps, pk):
        out = []
        G = len(tmps) // 2
        for j in range(0, len(pairs), G):
            grp = pairs[j:j+G]
            T = lambda k: tmps[2*k]
            for k, (r, d) in enumerate(grp):
                if pk: out.append(f'v_pk_mul_f32 {v(T(k),2)}, {v(r,2)}, {s(sL2,2)}')
                else:
                    for e in range(2): out.append(f'v_mul_f32 {v(T(k)+e)}, {s(sL2)}, {v(r+e)}')
            for k, (r, d) in enumerate(grp):
                for e in range(2):
                    out.append(f'v_exp_f32 {v(T(k)+e)}, {v(T(k)+e)} clamp')
                    out.append(f'v_max_f32 {v(r+e)}, {f32(1e-6)}, {v(r+e)}')
            for k, (r, d) in enumerate(grp):
                if pk: out.append(f'v_pk_add_f32 {v(r,2)}, {v(r,2)}, {v(T(k),2)}')
                else:
                    for e in range(2): out.append(f'v_add_f32 {v(r+e)}, {v(r+e)}, {v(T(k)+e)}')
            for k, (r, d) in enumerate(grp): out.append(f'v_cvt_pk_bf16_f32 {v(d)}, {v(r)}, {v(r+1)}')
        return out

    T8 = (5, 6, 7, 8, 4, 0, 1, 2, 3)
    kvg = [(i, kk, T) for i in range(8) for kk in range(2) for T in range(9)] + [(8, kk, T) for T in T8 for kk in range(2)]
    xreg = lambda i, kk, rt: X0 + ((2 * i + kk) * 2 + rt) * 4
    def kv_loads(n):
        i, kk, T = kvg[n]
        out = []
        if T == (0 if i < 8 else T8[0]):
            for rt in range(2):
                out.append((f'ds_read_b128 {v(xreg(i,kk,rt),4)}, {v(vXA+kk)} offset:{2048*rt}', ('x', i, kk)))
        slot = RING + 4 * (n % NS)
        if T < 4: reg, so = vWA + T, OFF_K
        elif T == 4: reg, so = vSH, OFF_K
        else: reg, so = vWA + T - 5, OFF_V
        for rd in range(2):
            out.append((f'ds_read_b64_tr_b16 {v(slot+2*rd,2)}, {v(reg)} offset:{so + (32*kk + 4*rd)*192}', ('w', n)))
        return out
    def kv_mfmas(n):
        i, kk, T = kvg[n]
        slot = RING + 4 * (n % NS)
        out = []
        for rt in range(2):
            d = v(ACC + 8 * T + 4 * rt, 4)
            out.append(f'v_mfma_f32_16x16x32_bf16 {d}, {v(xreg(i,kk,rt),4)}, {v(slot,4)}, {d if (i or kk) else 0}')
        return out
    def kv_enter(sg):
        a('s_barrier')
        move_slot(sg % 4, addr_regs)
        if sg in (0, 1, 4, 8): st({0:2, 1:3, 4:4, 8:5}[sg])
        if DBG == 1: st0(2 + sg)
    base = lambda T: ACC + 8 * T
    BS = vT + 2
    MAIN = lambda h: base(5 + h) + 4
    COL = lambda h: RING + 4 * h
    ROW = lambda h: base(h) + 4
    SS = base(4) + 4
    vq = VQ(a)
    done = lambda T: 288 + 4 * (T8.index(T) + 1) + 2
    vq.add(f'v_mov_b32 {v(vT+1)}, 0x3f803f80', 289)
    vq.add(f's_mul_i32 {s(sT0)}, {s(sW)}, 6144', 289)
    vq.add(f'v_lshl_add_u32 {v(vT)}, {v(vL)}, 4, {s(sT0)}', 289)
    for h in range(4):
        for p in range(4): vq.add(f'v_cvt_pk_bf16_f32 {v(base(5+h)+p)}, {v(base(5+h)+2*p)}, {v(base(5+h)+2*p+1)}', done(5 + h))
    for p in range(4): vq.add(f'v_cvt_pk_bf16_f32 {v(BS+p)}, {v(base(4)+2*p)}, {v(base(4)+2*p+1)}', done(4))
    for p in range(4): vq.add(f'v_cndmask_b32 {v(BS+p)}, {v(BS+p)}, {v(vT+1)}, {s(sMO,2)}')
    run_phase(len(kvg), NS, kv_loads, lambda n: [('w', n), ('x', kvg[n][0], kvg[n][1])], kv_mfmas, lambda n: kvg[n][0], kv_enter,
              extra=lambda m: vq.emit(m, 4 if m < 314 else 8))
    vq.flush()
    a('s_barrier')
    if DBG: st0(11 if DBG == 1 else 2)
    st(6)
    mf = lambda d, x, y: a(f'v_mfma_f32_16x16x32_bf16 {v(d,4)}, {v(x,4)}, {v(y,4)}, 0')
    tm = [MAIN(h) + i for h in range(4) for i in range(4)] + list(range(RING, RING + 4))
    for k_, t_ in enumerate(phi_ops([(base(h) + 2 * p, base(h) + p) for h in (4, 0, 1, 2, 3) for p in range(4)], tm, True)):
        a(t_)
        if DBG == 2 and k_ in (9, 49, 69, 79, 119, 139): st0({9: 3, 49: 4, 69: 5, 79: 6, 119: 7, 139: 8}[k_])
    qregs = [vWA, vWA + 1, vWA + 2, vWA + 3, vSH]
    fill = [f'v_sub_u32 {v(vSH)}, {v(vSH)}, {v(vSQ)}'] + [f'v_add_u32 {v(r)}, {SLOT}, {v(r)}' for r in qregs]
    cur_slot[0] = 1
    def fl(n):
        for _ in range(n):
            if fill: a(fill.pop(0))
    for h in range(4):
        mf(ROW(h), base(4), base(5 + h)); fl(2)
    mf(SS, base(4), BS)
    for h in range(4):
        mf(COL(h), base(h), BS)
        if h == 1:
            for r in range(2): a(f'v_cndmask_b32 {v(ROW(0)+r)}, {v(ROW(0)+r)}, {v(ROW(2)+r)}, {s(sMG,2)}')
        if h == 2:
            for r in range(2, 4): a(f'v_cndmask_b32 {v(ROW(0)+r)}, {v(ROW(1)+r)}, {v(ROW(3)+r)}, {s(sMG,2)}')
        if h == 3:
            for r in range(2): a(f'v_permlane32_swap_b32 {v(ROW(0)+r)}, {v(SS+r)}')
    cm = [f'v_cndmask_b32 {v(COL(0)+r)}, {v(COL(0)+r)}, {v(COL(h)+r)}, {s(m,2)}' for h, m in ((1, sM1), (2, sM2), (3, sM3)) for r in range(4)]
    mf(MAIN(0), base(0), base(5))
    for r in range(2, 4): a(f'v_permlane32_swap_b32 {v(ROW(0)+r)}, {v(SS+r)}')
    mf(MAIN(1), base(1), base(6))
    a(cm.pop(0)); a(cm.pop(0))
    mf(MAIN(2), base(2), base(7))
    a(f'ds_write_b128 {v(vT)}, {v(ROW(0),4)} offset:{RED + 5120}')
    a(cm.pop(0))
    mf(MAIN(3), base(3), base(8))
    if DBG == 2: st0(9)
    for k, t_ in enumerate(cm):
        a(t_)
        if k in (1, 4, 7): a(f'ds_write_b128 {v(vT)}, {v(MAIN(k // 3),4)} offset:{RED + 1024*(k // 3)}')
    a(f'ds_write_b128 {v(vT)}, {v(MAIN(3),4)} offset:{RED + 3072}')
    a(f'ds_write_b128 {v(vT)}, {v(COL(0),4)} offset:{RED + 4096}')
    a('s_waitcnt lgkmcnt(0)')
    st(7)
    if DBG == 2: st0(10)
    a('s_barrier')
    if DBG: st0(12)
    st(8)
    TORD = (4, 0, 1, 2, 3)
    NQ = 8
    QR = lambda n: RING - 8 + 4 * (n % NQ)
    qg = [(i, kk, T) for i in range(6) for kk in range(2) for T in range(5)] + [(i, kk, T) for T in TORD for i in range(6, 9) for kk in range(2)]
    QA = lambda T, rt: ACC + (2 * T + rt) * 4
    def q_loads(n):
        i, kk, T = qg[n]
        return [(f'ds_read_b64_tr_b16 {v(QR(n)+2*rd,2)}, {v(qregs[T])} offset:{(i%3)*12288 + (32*kk + 4*rd)*192}', ('w', n)) for rd in range(2)]
    def q_mfmas(n):
        i, kk, T = qg[n]
        out = []
        for rt in range(2):
            d = v(QA(T, rt), 4)
            out.append(f'v_mfma_f32_16x16x32_bf16 {d}, {v(QR(n),4)}, {v(xreg(i,kk,rt),4)}, {d if (i or kk) else 0}')
        return out
    def q_enter(sg):
        if sg:
            a('s_barrier')
            move_slot(1 + sg, qregs)
    tq = list(range(ACC + 40, ACC + 48))
    for k, T in enumerate(TORD):
        for t_ in phi_ops([(QA(T, rt) + 2 * p, QA(T, rt) + p) for rt in range(2) for p in range(2)], tq, k == 4): vq.add(t_, 120 + 12 * (k + 1) + 2)
        if T < 4:
            for rt in range(2):
                for e in range(2): vq.add(f'v_mov_b32 {v(QA(T,rt)+2+e)}, {v(QA(4,rt)+e)}')
    run_phase(len(qg), NQ, q_loads, lambda n: [('w', n)], q_mfmas, lambda n: n // 30, q_enter, DELAY=2, extra=lambda m: vq.emit(m, 16), pair=True)
    st(9)
    o_addr(a, sT1, sT0)
    a(f'v_lshlrev_b32 {v(vT)}, 4, {v(vL)}')
    a(f'v_add_u32 {v(vT+1)}, {18*1024}, {v(vT)}')
    a(f'v_lshlrev_b32 {v(vT+2)}, 2, {v(vL)}')
    a(f'v_add_u32 {v(vT+3)}, {18*1024}, {v(vT+2)}')
    a(f'v_add_u32 {v(vT+4)}, {FRG}, {v(vT)}')
    vq.flush()
    st(10)
    a('s_barrier')
    st(11)
    FR = 16; NUMO = 48; REMO = 80; RC = 88; OUT = 104
    for f in (4, 5, 6, 7, 0, 1, 2, 3):
        a(f'ds_read_b128 {v(FR+4*f,4)}, {v(vT+4)} offset:{REMD*(f>>2) + 1024*(f&3)}')
    for h in range(4):
        a(f's_waitcnt lgkmcnt({7-h})')
        for rt in range(2):
            d = v(REMO + 4 * rt, 4)
            a(f'v_mfma_f32_16x16x32_bf16 {d}, {v(FR+16+4*h,4)}, {v(QA(h,rt),4)}, {d if h else 0}')
    rc = []
    def both(fn):
        for rt in range(2): rc.append(fn(RC + 8 * rt, REMO + 4 * rt + 2))
    both(lambda r, dn: f'v_cvt_pk_bf16_f32 {v(r)}, {v(dn)}, {v(dn)}')
    both(lambda r, dn: f'v_lshlrev_b32 {v(r)}, 16, {v(r)}')
    both(lambda r, dn: f'v_add_f32 {v(r)}, {f32(1e-6)}, {v(r)}')
    both(lambda r, dn: f'v_cvt_pk_bf16_f32 {v(r)}, {v(r)}, {v(r)}')
    both(lambda r, dn: f'v_lshlrev_b32 {v(r)}, 16, {v(r)}')
    both(lambda r, dn: f'v_rcp_f32 {v(r+4)}, {v(r)}')
    both(lambda r, dn: f'v_mov_b32 {v(r)}, {v(r+4)}')
    both(lambda r, dn: f'v_mov_b32 {v(r+1)}, {v(r+4)}')
    both(lambda r, dn: f'v_permlane16_swap_b32 {v(r)}, {v(r+1)}')
    both(lambda r, dn: f'v_mov_b32 {v(r+2)}, {v(r)}')
    both(lambda r, dn: f'v_mov_b32 {v(r+3)}, {v(r+1)}')
    both(lambda r, dn: f'v_permlane32_swap_b32 {v(r)}, {v(r+2)}')
    both(lambda r, dn: f'v_permlane32_swap_b32 {v(r+1)}, {v(r+3)}')
    k = 0
    for h in range(4):
        a(f's_waitcnt lgkmcnt({3-h})')
        for rt in range(2):
            a(f'v_mfma_f32_16x16x32_bf16 {v(NUMO+(2*h+rt)*4,4)}, {v(FR+4*h,4)}, {v(QA(h,rt),4)}, 0')
            k += 1
            if k >= 2:
                for _ in range(4):
                    if rc: a(rc.pop(0))
    for t in rc: a(t)
    for rt in range(2):
        r = RC + 8 * rt; o = OUT + 12 * rt
        for h in range(4):
            n = NUMO + (2 * h + rt) * 4
            sel = f'op_sel:[0,{h&1}] op_sel_hi:[1,{h&1}]'
            a(f'v_pk_mul_f32 {v(n,2)}, {v(n,2)}, {v(r+(h&2),2)} {sel}')
            a(f'v_pk_mul_f32 {v(n+2,2)}, {v(n+2,2)}, {v(r+(h&2),2)} {sel}')
            a(f'v_cvt_pk_bf16_f32 {v(o+2*h)}, {v(n)}, {v(n+1)}')
            a(f'v_cvt_pk_bf16_f32 {v(o+2*h+1)}, {v(n+2)}, {v(n+3)}')
            if h & 1:
                a(f'buffer_store_dwordx4 {v(o+2*h-2,4)}, {v(vT+rt)}, {s(rWS,4)}, {s(sT1)} offen offset:{(h>>1)*1024} sc1')
        n = REMO + 4 * rt
        a(f'v_pk_mul_f32 {v(n,2)}, {v(n,2)}, {v(r+4,2)} op_sel:[0,0] op_sel_hi:[1,0]')
        a(f'v_cvt_pk_bf16_f32 {v(o+8)}, {v(n)}, {v(n+1)}')
        a(f'buffer_store_dword {v(o+8)}, {v(vT+2+rt)}, {s(rWS,4)}, {s(sT0)} offen sc1')
    st(12)
    if tail: tail()
    else:
        if st.enabled: a('s_waitcnt vmcnt(0)')
        st(13)
        st.flush()
        a('s_endpgm')

vTAG = 28
def gen_loader(a, st0, tail=None, pre_f=None, DBG=False, inter=None, P3=4):
    st = st0
    sd = (lambda k: st0(k)) if DBG else (lambda k: None)
    sPI, sOM, sOR, sPS, sP0 = 56, 64, 65, 58, 66
    a('s_setprio 3')
    a(f's_sub_u32 {s(sW)}, {s(sW)}, 4')
    VX, VW = 4, 8
    a(f'v_lshrrev_b32 v2, 3, {v(vL)}')
    a('v_mul_u32_u24 v2, 1152, v2')
    a(f'v_and_b32 v3, 7, {v(vL)}')
    a(f'v_lshrrev_b32 v12, 4, {v(vL)}')
    a('v_xor_b32 v3, v3, v12')
    a(f'v_lshl_add_u32 {v(VX)}, v3, 4, v2')
    a(f'v_xor_b32 {v(VX+1)}, 64, {v(VX)}')
    a(f'v_add_u32 {v(VX+2)}, {2*(9216-1024)}, {v(VX)}')
    a(f'v_add_u32 {v(VX+3)}, {3*(9216-1024)}, {v(VX+1)}')
    a(f'v_add_u32 {v(VX+1)}, {9216-1024}, {v(VX+1)}')
    a(f's_mov_b32 {s(sT0)}, 0x5556')
    for i in range(3):
        a(f'v_add_u32 v3, {64*i}, {v(vL)}')
        a('v_lshrrev_b32 v12, 2, v3')
        a(f'v_mul_u32_u24 v13, {s(sT0)}, v12')
        a('v_lshrrev_b32 v13, 16, v13')
        a('v_mul_u32_u24 v14, 12, v13')
        a('v_sub_u32 v14, v3, v14')
        a('v_lshrrev_b32 v15, 2, v13')
        a('v_and_b32 v15, 2, v15')
        a('v_xor_b32 v14, v14, v15')
        a('v_mul_u32_u24 v13, 3456, v13')
        a(f'v_lshl_add_u32 {v(VW+i)}, v14, 4, v13')
        if i: a(f'v_subrev_u32 {v(VW+i)}, {1024*i}, {v(VW+i)}')
    a(f's_lshl2_add_u32 {s(sT0)}, {s(sRB)}, {s(sW)}')
    a(f's_mul_i32 {s(sXB)}, {s(sT0)}, {32*1152}')
    a(f's_mul_i32 {s(sWB)}, {s(sHG)}, 144')
    a(f's_and_b32 {s(sWB)}, {s(sWB)}, 0xffc0')
    a(f's_mul_i32 {s(sT0)}, {s(sW)}, {16*3456}')
    a(f's_add_u32 {s(sWB)}, {s(sWB)}, {s(sT0)}')
    a(f's_lshl_b32 {s(sLX)}, {s(sW)}, 12')
    a(f's_mul_i32 {s(sLW)}, {s(sW)}, 3072')
    a('s_waitcnt lgkmcnt(0)')
    srd(a, rX, P['x'], XB); srd(a, rW, P['wqkv'], WB)
    fifo = []
    def vm(text, tag): a(text); fifo.append(tag)
    def vwait(tag, extra=''):
        idx = max(i for i, t in enumerate(fifo) if t == tag)
        a(f's_waitcnt vmcnt({len(fifo) - idx - 1}){extra}')
        del fifo[:idx + 1]
    def issue(k, mid=None):
        sl = (k % 4) * SLOT
        a(f's_add_u32 {s(sT0)}, {s(sXB)}, {128*k}')
        a(f's_add_u32 m0, {s(sLX)}, {sl}')
        a(f's_add_u32 {s(sT1)}, {s(sWB)}, {k*64*3456 + 1152}')
        for i in range(4): vm(f'buffer_load_dwordx4 {v(VX+i)}, {s(rX,4)}, {s(sT0)} offen offset:{1024*i} lds', k)
        if mid: mid()
        a(f's_add_u32 m0, {s(sLW)}, {sl + OFF_K}')
        a(f's_add_u32 {s(sT0)}, {s(sT1)}, 1152')
        for i in range(3): vm(f'buffer_load_dwordx4 {v(VW+i)}, {s(rW,4)}, {s(sT1)} offen offset:{1024*i} lds', k)
        a(f's_add_u32 m0, {s(sLW)}, {sl + OFF_V}')
        for i in range(3): vm(f'buffer_load_dwordx4 {v(VW+i)}, {s(rW,4)}, {s(sT0)} offen offset:{1024*i} lds', k)
    def issue_q(j, mid=None):
        for b in range(3):
            a(f's_add_u32 {s(sT1)}, {s(sWB)}, {(3*j+b)*64*3456}')
            a(f's_add_u32 m0, {s(sLW)}, {(j+1)*SLOT + 12288*b}')
            for i in range(3): vm(f'buffer_load_dwordx4 {v(VW+i)}, {s(rW,4)}, {s(sT1)} offen offset:{1024*i} lds', f'q{j}')
            if b == 0 and mid: mid()
    GW, GA, GX = 32, 50, 54
    def add2(d, x, y, op='add'):
        for e in range(2): a(f'v_{op}_f32 {v(d+e)}, {v(x+e)}, {v(y+e)}')
    issue(0)
    if inter:
        a(f's_branch {L}_l2')
        inter()
        a.label(f'{L}_l2')
    st(1)
    a(f'v_and_b32 v11, 15, {v(vL)}')
    a('v_lshlrev_b32 v12, 3, v11')
    vL16, vS = 2, 76
    a(f'v_lshlrev_b32 {v(vL16)}, 4, {v(vL)}')
    a(f's_lshl2_add_u32 {s(sPS)}, {s(sID)}, {s(sW)}')
    a(f's_mul_i32 {s(sPS)}, {s(sPS)}, 1536')
    a(f's_add_u32 {s(sPS)}, {s(sPS)}, {WS_P:#x}')
    vL16, vH8, vHP, vGA, vD0, vFL, vRD, vRH, vGS, vO1 = 2, 3, 16, 17, 22, 23, 24, 25, 26, 27
    def consts():
        a(f'v_and_b32 v13, 31, {v(vL)}')
        a(f'v_lshrrev_b32 v14, 5, {v(vL)}')
        a('v_lshlrev_b32 v13, 4, v13')
        a(f'v_lshl_add_u32 {v(vH8)}, v14, 3, v13')
        a('v_mul_u32_u24 v14, 6144, v14')
        a(f'v_add_u32 {v(vHP)}, v14, v13')
        a(f's_lshl2_add_u32 {s(sT0)}, {s(sHG)}, {s(sW)}')
        a(f's_lshl_b32 {s(sT0)}, {s(sT0)}, 2')
        a(f'v_lshrrev_b32 v21, 4, {v(vL)}')
        a(f'v_add_u32 v13, {s(sT0)}, v21')
        a(f's_lshl_b32 {s(sT1)}, {s(sRB)}, 9')
        a(f'v_lshl_add_u32 {v(vGS)}, v13, 2, {s(sT1)}')
        a('v_bfe_u32 v14, v13, 1, 3')
        a('v_lshrrev_b32 v15, 1, v11')
        a('v_xor_b32 v14, v14, v15')
        a('v_lshlrev_b32 v13, 7, v13')
        a('v_lshl_add_u32 v13, v14, 4, v13')
        a('v_and_b32 v14, 1, v11')
        a(f'v_lshl_add_u32 {v(vGA)}, v14, 3, v13')
        a(f'v_add_u32 {v(vGA+1)}, {2*SLOT}, {v(vGA)}')
        a(f's_lshl_b32 {s(sT0)}, {s(sHG)}, 4')
        a(f'v_add_u32 v13, {s(sT0)}, {v(vL)}')
        a(f'v_and_b32 v14, 7, {v(vL)}')
        a(f'v_lshl_add_u32 v14, v14, 4, {s(sRB)}')
        a(f'v_cmp_gt_u32 vcc, 16, {v(vL)}')
        a('v_cndmask_b32 v13, v14, v13, vcc')
        a(f'v_lshlrev_b32 {v(vFL)}, 7, v13')
        a(f's_and_b32 {s(sPI)}, {s(sW)}, 1')
        a(f's_lshl_b32 {s(sT0)}, {s(sW)}, 10')
        a(f'v_add_u32 {v(vRD)}, {s(sT0)}, {v(vL16)}')
        a(f's_lshr_b32 {s(sT0)}, {s(sW)}, 1')
        a(f's_lshl_b32 {s(sT0)}, {s(sT0)}, 10')
        a(f's_lshl3_add_u32 {s(sT0)}, {s(sPI)}, {s(sT0)}')
        a(f'v_add_u32 {v(vRH)}, {s(sT0)}, {v(vL16)}')
        for i in range(4): a(f'v_mov_b32 {v(GA+i)}, 0')

        scatter_addr()
    def scatter_addr():
        vC, vGg = 11, 21
        t = list(range(64, 74))
        a(f'v_subrev_u32 v{t[0]}, 8, {v(vC)}')
        a(f'v_ashrrev_i32 v{t[0]}, 1, v{t[0]}')
        a(f'v_and_b32 v{t[1]}, 1, {v(vC)}')
        a(f'v_mov_b32 v{t[2]}, {DUM}')
        a(f's_lshl_b32 {s(sT0)}, {s(sPI)}, 2')
        a(f's_cmp_ge_u32 {s(sW)}, 2')
        a(f's_cbranch_scc1 {L}_sc1')
        a(f'v_cmp_gt_u32 vcc, 8, {v(vC)}')
        a(f'v_cndmask_b32 v{t[3]}, v{t[0]}, {v(vC)}, vcc')
        a(f'v_cndmask_b32 v{t[4]}, v{t[1]}, 2, vcc')
        a(f'v_mul_u32_u24 v{t[3]}, {1024 + 64}, v{t[3]}')
        a(f'v_lshl_add_u32 v{t[3]}, v{t[4]}, 4, v{t[3]}')
        a(f'v_lshl_add_u32 v{t[3]}, {v(vGg)}, 8, v{t[3]}')
        a(f's_add_u32 {s(sT0)}, {s(sT0)}, {FRG + REMD}')
        a(f'v_add_u32 v{t[3]}, {s(sT0)}, v{t[3]}')
        a(f'v_and_b32 v{t[4]}, 12, {v(vC)}')
        a(f'v_cmp_eq_u32 vcc, 4, v{t[4]}')
        a(f'v_cndmask_b32 {v(vD0)}, v{t[3]}, v{t[2]}, vcc')
        a(f's_branch {L}_sc2')
        a.label(f'{L}_sc1')
        a(f'v_and_b32 v{t[3]}, 1, {v(vGg)}')
        a(f'v_lshl_add_u32 v{t[4]}, v{t[3]}, 1, {s(sPI)}')
        a(f'v_lshlrev_b32 v{t[5]}, 10, v{t[4]}')
        a(f'v_lshl_add_u32 v{t[5]}, v{t[3]}, 8, v{t[5]}')
        a(f's_add_u32 {s(sT0)}, {s(sT0)}, {FRG + 8}')
        a(f'v_add_u32 v{t[5]}, {s(sT0)}, v{t[5]}')
        a(f'v_lshl_add_u32 v{t[6]}, {v(vC)}, 4, v{t[5]}')
        a(f'v_lshl_add_u32 v{t[7]}, v{t[4]}, 6, v{t[5]}')
        a(f'v_add_u32 v{t[7]}, {REMD}, v{t[7]}')
        a(f'v_lshl_add_u32 v{t[8]}, v{t[1]}, 4, v{t[7]}')
        a(f'v_cmp_eq_u32 vcc, v{t[0]}, v{t[4]}')
        a(f'v_cndmask_b32 v{t[8]}, v{t[2]}, v{t[8]}, vcc')
        a(f'v_add_u32 v{t[7]}, 32, v{t[7]}')
        a(f'v_cmp_eq_u32 vcc, 0, {v(vC)}')
        a(f'v_cndmask_b32 v{t[8]}, v{t[8]}, v{t[7]}, vcc')
        a(f'v_cmp_gt_u32 vcc, 32, {v(vL)}')
        a(f'v_cndmask_b32 {v(vD0)}, v{t[8]}, v{t[6]}, vcc')
        a.label(f'{L}_sc2')
    gx = lambda k: (GX if k >= 2 else 80) + 2 * (k & 1)
    def gate_read(k):
        sl = k % 4
        a(f'ds_read_b64 {v(gx(k),2)}, {v(vGA + (sl >> 1))} offset:{(sl & 1) * SLOT}')
    def gate_acc(k):
        x = gx(k); t = 58
        for d in range(2):
            a(f'v_lshlrev_b32 {v(t+4*d)}, 16, {v(x+d)}')
            a(f'v_and_b32 {v(t+4*d+1)}, 0xffff0000, {v(x+d)}')
            a(f'v_lshlrev_b32 {v(t+4*d+2)}, 16, {v(GW+2*k+d)}')
            a(f'v_and_b32 {v(t+4*d+3)}, 0xffff0000, {v(GW+2*k+d)}')
        for d in range(2): add2(t+4*d, t+4*d, t+4*d+2, 'mul')
        for d in range(2): a(f'v_cvt_pk_bf16_f32 {v(t+4*d+2)}, {v(t+4*d)}, {v(t+4*d+1)}')
        for d in range(2):
            a(f'v_lshlrev_b32 {v(t+4*d)}, 16, {v(t+4*d+2)}')
            a(f'v_and_b32 {v(t+4*d+1)}, 0xffff0000, {v(t+4*d+2)}')
        for d in range(2): add2(GA+2*d, GA+2*d, t+4*d, 'add')
    vS = 12
    consts()
    if pre_f: pre_f(None, -1)
    sd(2)
    sd(3)
    issue(1)
    sd(11)
    if DBG:
        st = Stamper(a, 0, 'light'); st.keep = ()
    vS = 12
    srd(a, rWS, P['ws'], WS_SIZE)
    a('v_mov_b32 v30, 0')
    for k in range(9):
        vwait(k)
        a('s_barrier')
        if k: gate_read(k - 1)
        if k == 8: gate_read(8)
        def mid():
            for j in (2 * k, 2 * k + 1):
                if j < 9: vm(f'global_load_dwordx2 {v(GW+2*j,2)}, v12, {s(P["gw"],2)} offset:{128*j}', f'gw{j}')
            if k == 5: vm(f'global_load_dwordx2 {v(vTAG,2)}, v30, {s(P["dbg"],2)} sc1', 'tag')
            if k >= 2:
                a('s_waitcnt lgkmcnt(0)')
                for j in ([0, 1] if k == 2 else [7, 8] if k == 8 else [k - 1]):
                    assert f'gw{j}' not in fifo
                    gate_acc(j)
        if k <= 6: issue(k + 2, mid)
        else: issue_q(k - 7, mid)
    st(4)
    a('s_barrier')
    st(5)
    a(f's_mov_b32 {s(sT2)}, {WS_F:#x}')
    vF = 18
    vm(f'buffer_load_dwordx2 {v(vF,2)}, {v(vFL)}, {s(rWS,4)}, {s(sT2)} offen sc1', 'fl')
    issue_q(2)
    for i in range(4): a(f'v_mov_b32 {v(vS+i)}, 0')
    a(f'v_add_u32 {v(vO1)}, {FRG}, {v(vRD)}')
    a(f'ds_write_b128 {v(vO1)}, {v(vS,4)}')
    a(f'ds_write_b128 {v(vO1)}, {v(vS,4)} offset:{REMD}')
    vwait('q0', ' lgkmcnt(0)')
    st(7)
    a('s_barrier')
    st(8)
    S0 = 64
    for w in range(4):
        a(f'ds_read_b128 {v(S0+6*w,4)}, {v(vRD)} offset:{RED + 6144*w}')
        a(f'ds_read_b64 {v(S0+6*w+4,2)}, {v(vRH)} offset:{RED + 6144*w + 4096}')
    a('s_waitcnt lgkmcnt(4)')
    for p in range(3): add2(S0+2*p, S0+2*p, S0+6+2*p, 'add')
    a('s_waitcnt lgkmcnt(0)')
    for p in range(3): add2(S0+12+2*p, S0+12+2*p, S0+18+2*p, 'add')
    for p in range(3): add2(S0+2*p, S0+2*p, S0+12+2*p, 'add')
    a(f's_mov_b32 {s(sI)}, 0')
    vwait('fl')
    a.label(f'{L}_fl')
    a(f'v_cmp_ne_u64 vcc, {v(vF,2)}, {v(vTAG,2)}')
    a(f'v_cmp_eq_u32 {s(64,2)}, 0, {v(vTAG)}')
    a(f's_or_b64 vcc, vcc, {s(64,2)}')
    a(f's_cbranch_scc0 {L}_flok')
    a(f'global_load_dwordx2 {v(vTAG,2)}, v30, {s(P["dbg"],2)} sc1')
    a(f'buffer_load_dwordx2 {v(vF,2)}, {v(vFL)}, {s(rWS,4)}, {s(sT2)} offen sc1')
    a(f's_add_u32 {s(sI)}, {s(sI)}, 1')
    a(f's_cmp_lt_u32 {s(sI)}, {SPIN}')
    a('s_waitcnt vmcnt(0)')
    a(f's_cbranch_scc1 {L}_fl')
    a.label(f'{L}_flok')
    vm(f'buffer_store_dwordx4 {v(S0,4)}, {v(vL16)}, {s(rWS,4)}, {s(sPS)} offen sc1', 'p')
    vm(f'buffer_store_dwordx2 {v(S0+4,2)}, {v(vH8)}, {s(rWS,4)}, {s(sPS)} offen offset:1024 sc1', 'p')
    st(2)
    if pre_f: pre_f(lambda t_: vm(t_, 'wo'), 0)
    vwait('q2')
    st(9)
    a('s_barrier')
    st(10)
    st(3)
    a(f's_mul_i32 {s(sT0)}, {s(sHG)}, {16*6144}')
    a(f's_mul_i32 {s(sT1)}, {s(sW)}, 1536')
    a(f's_add_u32 {s(sT0)}, {s(sT0)}, {s(sT1)}')
    a(f's_add_u32 {s(sT0)}, {s(sT0)}, {WS_P:#x}')
    a(f'v_add_u32 v31, 6144, {v(vL16)}')
    PA = 96
    def pload(p, fn):
        d = PA + 12 * p
        a(f's_add_u32 {s(sT1)}, {s(sT0)}, {12288*p}')
        fn(f'buffer_load_dwordx4 {v(d,4)}, {v(vL16)}, {s(rWS,4)}, {s(sT1)} offen sc1')
        fn(f'buffer_load_dwordx4 {v(d+4,4)}, v31, {s(rWS,4)}, {s(sT1)} offen sc1')
        fn(f'buffer_load_dwordx4 {v(d+8,4)}, {v(vHP)}, {s(rWS,4)}, {s(sT1)} offen offset:1024 sc1')
    def pcheck(p):
        d = PA + 12 * p
        for i in range(4): a(f'v_max3_u32 v{64+i}, {v(d+3*i)}, {v(d+3*i+1)}, {v(d+3*i+2)}')
        a('v_max3_u32 v64, v64, v65, v66')
        a('v_max_u32 v64, v64, v67')
        a('v_cmp_eq_u32 vcc, -1, v64')
    for p in range(8):
        if p == P3: a('s_barrier')
        pload(p, lambda t: vm(t, ('p', p)))
    if tail:
        a(f's_lshl_b32 {s(sOM)}, {s(sRB)}, 4')
        piece_addr(a, vFL, 13, s(sOM), 16)
        a(f's_mov_b32 {s(sOM)}, {WS_FP:#x}')
        vm(f'buffer_load_dwordx2 {v(vF,2)}, {v(vFL)}, {s(rWS,4)}, {s(sOM)} offen sc1', 'of')
    add2(GA, GA, GA+2, 'add')
    a(f'v_add_f32 {v(GA)}, {v(GA)}, {v(GA+1)}')
    for sh in (1, 2, 4, 8): a(f'v_add_f32_dpp {v(GA)}, {v(GA)}, {v(GA)} row_ror:{sh} row_mask:0xf bank_mask:0xf')
    g = v(GA)
    a(f'v_cvt_pk_bf16_f32 {g}, {g}, {g}')
    a(f'v_lshlrev_b32 {g}, 16, {g}')
    a(f'v_mul_f32 {g}, {f32(-math.log2(math.e))}, {g}')
    a(f'v_exp_f32 {g}, {g}')
    a(f'v_add_f32 {g}, 1.0, {g}')
    a(f'v_rcp_f32 {g}, {g}')
    a(f'v_cvt_pk_bf16_f32 {g}, {g}, {g}')
    a(f'v_lshlrev_b32 {g}, 16, {g}')
    a(f's_mov_b32 {s(sT1)}, {WS_G:#x}')
    vm(f'buffer_store_dword {g}, {v(vGS)}, {s(rWS,4)}, {s(sT1)} offen sc1', 'g')
    if pre_f: pre_f(lambda t_: vm(t_, 'wo'), 1)
    a(f's_mov_b32 {s(sI)}, 0')
    st(6)
    for p in range(8):
        d = PA + 12 * p
        vwait(('p', p))
        pcheck(p)
        a(f's_mov_b32 {s(sP0)}, {p}')
        a(f's_cbranch_vccnz {L}_slow')
        a.label(f'{L}_ok{p}')
        for q in range(2): add2(d+2*q, d+2*q, d+4+2*q, 'add')
        if p:
            for q in range(2): add2(PA+8+2*q, PA+8+2*q, d+8+2*q, 'add')
            for q in range(2): add2(PA+2*q, PA+2*q, d+2*q, 'add')
    for q in range(2): a(f'v_permlane32_swap_b32 {v(PA+8+q)}, {v(PA+10+q)}')
    for q in range(2): a(f'v_cvt_pk_bf16_f32 {v(PA+q)}, {v(PA+2*q)}, {v(PA+2*q+1)}')
    add2(PA+8, PA+8, PA+10, 'add')
    a(f'ds_write_b64 {v(vO1)}, {v(PA,2)}')
    a(f'v_cvt_pk_bf16_f32 {v(PA+2)}, {v(PA+8)}, {v(PA+9)}')
    a(f'ds_write_b32 {v(vD0)}, {v(PA+2)}')
    if tail:
        a(f's_mov_b32 {s(sOR)}, 0')
        vwait('of')
        a.label(f'{L}_of')
        a(f'v_cmp_ne_u64 vcc, {v(vF,2)}, {v(vTAG,2)}')
        a(f's_cbranch_vccz {L}_ofok')
        a(f'buffer_load_dwordx2 {v(vF,2)}, {v(vFL)}, {s(rWS,4)}, {s(sOM)} offen sc1')
        a(f's_add_u32 {s(sOR)}, {s(sOR)}, 1')
        a(f's_cmp_lt_u32 {s(sOR)}, {SPIN}')
        a('s_waitcnt vmcnt(0)')
        a(f's_cbranch_scc1 {L}_of')
        a.label(f'{L}_ofok')
        st.value(11, s(sOR))
    if pre_f: pre_f(a, 2)
    a('s_waitcnt lgkmcnt(0)')
    st(12)
    if not DBG: st.value(13, s(sI))
    a('s_barrier')
    if tail: tail()
    else:
        st.flush()
        a('s_endpgm')
    a.label(f'{L}_slow')
    a('s_waitcnt vmcnt(0)')
    a(f's_mov_b32 {s(sT2)}, 0')
    for p in range(8):
        pcheck(p)
        a(f's_cbranch_vccz {L}_sl{p}')
        pload(p, a)
        a(f's_mov_b32 {s(sT2)}, 1')
        a.label(f'{L}_sl{p}')
    a(f's_add_u32 {s(sI)}, {s(sI)}, 1')
    a(f's_cmp_lt_u32 {s(sI)}, {SPIN}')
    a(f's_cselect_b32 {s(sT2)}, {s(sT2)}, 0')
    a(f's_cmp_lg_u32 {s(sT2)}, 0')
    a(f's_cbranch_scc1 {L}_slow')
    a('s_waitcnt vmcnt(0)')
    for p in range(7):
        a(f's_cmp_eq_u32 {s(sP0)}, {p}')
        a(f's_cbranch_scc1 {L}_ok{p}')
    a(f's_branch {L}_ok7')
```

```python
from common import *
OWO = 0
OB = 3 * 40960
sT0, sT1, sT2, sI = 47, 48, 49, 50
sOR2, sONB, sOS, sSO, sRT, sP0, sOA = 56, 57, 58, 59, 60, 61, 62
vL, vTAG = 1, 28
WS_FB = WS_F + 128 * 128
WS_FD = WS_FU
L = 'o'

def done_flag(a, sid, wave, vz):
    a(f's_lshl4_add_u32 {s(sT0)}, {sid}, {wave}')
    a(f's_lshl3_add_u32 {s(sT0)}, {s(sT0)}, {WS_FD:#x}')
    a('s_mov_b64 exec, 1')
    a(f'buffer_store_dwordx2 {v(vTAG,2)}, {v(vz)}, {s(rWS,4)}, {s(sT0)} offen sc1')
    a('s_mov_b64 exec, -1')

def wo_setup(a):
    srd(a, rWO, P['wo'], WOB)
    a(f's_mov_b32 {s(sT1)}, 0x5556')
    for i in range(3):
        a(f'v_add_u32 v220, {64*i}, {v(vL)}')
        a('v_lshrrev_b32 v221, 2, v220')
        a(f'v_mul_u32_u24 v222, {s(sT1)}, v221')
        a('v_lshrrev_b32 v222, 16, v222')
        a('v_mul_u32_u24 v223, 12, v222')
        a('v_sub_u32 v223, v220, v223')
        a('v_lshrrev_b32 v224, 1, v222')
        a('v_and_b32 v224, 2, v224')
        a('v_xor_b32 v223, v223, v224')
        a('v_mul_u32_u24 v222, 1152, v222')
        a(f'v_lshl_add_u32 {v(200+i)}, v223, 4, v222')
        if i: a(f'v_subrev_u32 {v(200+i)}, {1024*i}, {v(200+i)}')
    a(f's_mul_i32 {s(sSO)}, {s(sW)}, {16*1152}')
    a(f's_mul_i32 {s(sT1)}, {s(sONB)}, 192')
    a(f's_add_u32 {s(sSO)}, {s(sSO)}, {s(sT1)}')
    a(f's_mul_i32 {s(sRT)}, {s(sW)}, {16*192}')
def wo_load(a, js, vm=None):
    for j in js:
        a(f's_add_u32 m0, {s(sRT)}, {OWO + j*64*192}')
        a(f's_add_u32 {s(sT2)}, {s(sSO)}, {j*64*1152}')
        for i in range(3): (vm or a)(f'buffer_load_dwordx4 {v(200+i)}, {s(rWO,4)}, {s(sT2)} offen offset:{1024*i} lds')

vP, vQ, vPR, vQR, vG, vOMG, vST, vBA, vL16, vL4, vGA, vRP, vBF, vBS = 203, 204, 205, 206, 207, 208, 209, 210, 211, 212, 213, 214, 215, 216
vO, vACC, vA = 64, 136, 160
sBD, sFB, sBS, sOO = 67, 68, 69, 63
sRTI = 61
sBL = 66
sOH = 55
OX = OB + 12288
vXA = 217
def o_setup(a):
    a(f's_lshl2_add_u32 {s(sRTI)}, {s(sOR2)}, {s(sW)}')
    srd(a, rOUT, P['out'], XB)
    a(f's_mul_i32 {s(sT2)}, {s(sONB)}, {(128 * 65536 + 2) // 3}')
    a(f's_lshr_b32 {s(sT2)}, {s(sT2)}, 16')
    a(f's_add_u32 {s(sT2)}, {s(sT2)}, 256')
    piece_addr(a, vBF, 220, s(sT2), 44)
    a(f's_mov_b32 {s(sFB)}, {WS_FP:#x}')
    a(f'v_lshrrev_b32 v221, 3, {v(vL)}')
    a(f'v_and_b32 v220, 7, {v(vL)}')
    a('v_lshlrev_b32 v220, 4, v220')
    a(f'v_lshl_add_u32 {v(vBS)}, v221, 12, v220')
    a(f's_lshl2_add_u32 {s(sBS)}, {s(sONB)}, {s(sW)}')
    a(f's_mul_i32 {s(sBS)}, {s(sBS)}, {24*4096}')
    a(f's_lshl_b32 {s(sT2)}, {s(sOR2)}, 7')
    a(f's_add_u32 {s(sBS)}, {s(sBS)}, {s(sT2)}')
    a(f's_add_u32 {s(sBS)}, {s(sBS)}, {WS_B:#x}')
    a(f's_mul_i32 {s(sBD)}, {s(sW)}, 3072')
    a(f's_add_u32 {s(sBD)}, {s(sBD)}, {OB}')
    a(f's_mul_i32 {s(sOA)}, {s(sRTI)}, {18*1024}')
    a(f's_lshl_b32 {s(sT2)}, {s(sOH)}, 10')
    a(f's_add_u32 {s(sT2)}, {s(sT2)}, {16*1024}')
    a(f'v_and_b32 v220, 3, {v(vL)}')
    a(f'v_lshl_add_u32 {v(vRP)}, v220, 8, {s(sT2)}')
    a(f'v_lshl_add_u32 {v(vL4)}, {v(vL)}, 2, {s(sT2)}')
    a(f's_lshl_b32 {s(sT2)}, {s(sOH)}, 13')
    a(f'v_lshl_add_u32 {v(vL16)}, {v(vL)}, 4, {s(sT2)}')
    a(f's_mul_i32 {s(sT2)}, {s(sW)}, 6144')
    a(f's_add_u32 {s(sT2)}, {s(sT2)}, {OX}')
    a(f'v_lshl_add_u32 {v(vXA)}, {v(vL)}, 4, {s(sT2)}')
    a(f's_mul_i32 {s(sT2)}, {s(sOH)}, {288*192}')
    a(f'v_and_b32 v219, 15, {v(vL)}')
    a(f'v_lshlrev_b32 {v(vGA)}, 2, v219')
    a(f'v_lshrrev_b32 v220, 4, {v(vL)}')
    a(f'v_lshrrev_b32 v221, 2, {v(vL)}')
    a(f'v_and_b32 v222, 3, {v(vL)}')
    a('v_mul_u32_u24 v223, 192, v221')
    a('v_lshl_add_u32 v223, v222, 3, v223')
    a(f'v_add_u32 v223, {s(sT2)}, v223')
    a('v_and_b32 v224, 1, v220')
    a(f'v_lshl_add_u32 {v(vP)}, v224, 5, v223')
    a('v_xor_b32 v224, 1, v224')
    a(f'v_lshl_add_u32 {v(vQ)}, v224, 5, v223')
    a(f'v_bfe_u32 v224, {v(vL)}, 3, 1')
    a('v_mul_u32_u24 v225, 72, v224')
    a(f'v_bfe_u32 v224, {v(vL)}, 2, 1')
    a('v_add_u32 v225, v225, v224')
    a(f'v_bfe_u32 v224, {v(vL)}, 4, 1')
    a('v_lshl_add_u32 v225, v224, 1, v225')
    a(f'v_lshrrev_b32 v224, 5, {v(vL)}')
    a('v_mul_u32_u24 v223, 36, v224')
    a('v_add3_u32 v225, v225, v223, 16')
    a('v_mul_u32_u24 v225, 192, v225')
    a('v_lshl_add_u32 v225, v222, 3, v225')
    a(f'v_add_u32 v225, {s(sT2)}, v225')
    a(f'v_lshl_add_u32 {v(vPR)}, v224, 5, v225')
    a('v_xor_b32 v224, 1, v224')
    a(f'v_lshl_add_u32 {v(vQR)}, v224, 5, v225')
    a('v_lshlrev_b32 v225, 7, v221')
    a('v_lshl_add_u32 v225, v222, 3, v225')
    a(f's_lshl_b32 {s(sT1)}, {s(sW)}, 5')
    a(f's_lshl_b32 {s(sT2)}, {s(sOH)}, 13')
    a(f's_add_u32 {s(sT1)}, {s(sT1)}, {s(sT2)}')
    a(f's_add_u32 {s(sT1)}, {s(sT1)}, {OB}')
    a(f'v_add_u32 {v(vBA)}, {s(sT1)}, v225')
    a('v_mul_u32_u24 v225, 1152, v219')
    a(f'v_bfe_u32 v224, {v(vL)}, 4, 1')
    a('v_lshl_add_u32 v225, v224, 5, v225')
    a(f'v_lshrrev_b32 v224, 5, {v(vL)}')
    a(f'v_lshl_add_u32 {v(vST)}, v224, 4, v225')
    a(f's_mul_i32 {s(sOO)}, {s(sRTI)}, {16*1152}')
    a(f's_mul_i32 {s(sT1)}, {s(sONB)}, 192')
    a(f's_add_u32 {s(sOO)}, {s(sOO)}, {s(sT1)}')
    a(f's_lshl_b32 {s(sT1)}, {s(sOH)}, 7')
    a(f's_add_u32 {s(sOO)}, {s(sOO)}, {s(sT1)}')
    a(f's_cmp_eq_u32 {s(sOH)}, 0')
    a(f's_cselect_b32 {s(sBD)}, {s(sBD)}, 0')

def o_flags(a):
    a(f's_lshl_b32 {s(sT0)}, {s(sRTI)}, 1')
    piece_addr(a, 2, 3, s(sT0), 2)
    a(f'v_add_u32 v2, {128*128}, v2')
    a(f's_and_b32 {s(sT0)}, {s(sRTI)}, 7')
    a(f's_lshr_b32 {s(sT1)}, {s(sRTI)}, 3')
    a(f's_lshl4_add_u32 {s(sT0)}, {s(sT0)}, {s(sT1)}')
    a(f's_lshl_b32 {s(sT0)}, {s(sT0)}, 7')
    a(f'v_mov_b32 v3, {s(sT0)}')
    a(f'v_cmp_gt_u32 vcc, 8, {v(vL)}')
    a('v_cndmask_b32 v24, v3, v2, vcc')
    a(f's_mov_b32 {s(sT2)}, {WS_F:#x}')
    a(f'buffer_load_dwordx2 v[26:27], v24, {s(rWS,4)}, {s(sT2)} offen sc1')
    a(f's_mov_b32 {s(sI)}, 0')
    a.label(f'{L}_fl')
    a('s_waitcnt vmcnt(0)')
    a(f'v_cmp_ne_u64 vcc, v[26:27], {v(vTAG,2)}')
    a(f's_cbranch_vccz {L}_flok')
    a(f'buffer_load_dwordx2 v[26:27], v24, {s(rWS,4)}, {s(sT2)} offen sc1')
    a(f's_add_u32 {s(sI)}, {s(sI)}, 1')
    a(f's_cmp_lt_u32 {s(sI)}, {SPIN}')
    a(f's_cbranch_scc1 {L}_fl')
    a.label(f'{L}_flok')

def gen_comp(a, st, OUTF='', BC=5, DBG=False):
    NSLOT = 8
    a.label(f'{L}_comp')
    def bpoll(): a(f'buffer_load_dwordx2 v[36:37], {v(vBF)}, {s(rWS,4)}, {s(sFB)} offen sc1')
    a(f's_cmp_lg_u32 {s(sOH)}, 0')
    a(f's_cbranch_scc1 {L}_nbp')
    bpoll()
    a(f'v_lshl_add_u32 v24, {v(vL)}, 4, {s(sBD)}')
    a(f's_mov_b32 {s(sBL)}, {s(sBD)}')
    a.label(f'{L}_nbp')
    a('s_waitcnt vmcnt(0)')
    st(2)
    def btest(notyet):
        a(f'v_cmp_ne_u64 vcc, v[36:37], {v(vTAG,2)}')
        a(f's_cbranch_vccnz {notyet}')
    def bload():
        for i in range(3):
            a(f's_add_u32 m0, {s(sBL)}, {1024*i}')
            a(f's_add_u32 {s(sT0)}, {s(sBS)}, {8*4096*i}')
            a(f'buffer_load_dwordx4 {v(vBS)}, {s(rWS,4)}, {s(sT0)} offen sc1 lds')
        a(f's_mov_b32 {s(sBD)}, 0')
    def issue_reads(i):
        c, m = divmod(i, 6)
        slot = vA + 4 * (i % NSLOT)
        for rd in range(2):
            if c < 8:
                row = 36 * c + 20 * rd
                reg = vP if ((m & 1) ^ ((row // 4) & 1)) == 0 else vQ
            else:
                row = 144 * rd
                reg = vPR if (m & 1) == 0 else vQR
            a(f'ds_read_b64_tr_b16 {v(slot+2*rd,2)}, {v(reg)} offset:{row * 192 + (m >> 1) * 64}')
    LA, N = 7, 54
    issued = 0
    def ensure(upto):
        nonlocal issued
        while issued < min(upto, N):
            issue_reads(issued); issued += 1
    a(f's_mov_b32 {s(sI)}, 0')
    a(f's_add_u32 {s(sT2)}, {s(sOA)}, 4096')
    a(f's_lshl_b32 {s(sT1)}, {s(sRTI)}, 6')
    a(f's_add_u32 {s(sT1)}, {s(sT1)}, {WS_G:#x}')
    a('s_barrier')
    st(1)
    a(f'buffer_load_dword v25, {v(vRP)}, {s(rWS,4)}, {s(sOA)} offen offset:252 sc1')
    ensure(LA)
    a.label(f'{L}_rp')
    a('s_waitcnt vmcnt(0)')
    a('v_cmp_eq_u32 vcc, -1, v25')
    a(f's_cbranch_vccz {L}_go')
    a('s_sleep 4')
    a(f'buffer_load_dword v25, {v(vRP)}, {s(rWS,4)}, {s(sOA)} offen offset:252 sc1')
    a(f's_add_u32 {s(sI)}, {s(sI)}, 1')
    a(f's_cmp_lt_u32 {s(sI)}, {SPIN}')
    a(f's_cbranch_scc1 {L}_rp')
    a.label(f'{L}_go')
    st(3)
    st.value(9, s(sI))
    def oload(c):
        if c < 8: a(f'buffer_load_dwordx4 {v(vO+4*c,4)}, {v(vL16)}, {s(rWS,4)}, {s(sOA if c < 4 else sT2)} offen offset:{(c%4)*1024} sc1')
        elif c == 8:
            for h in range(4): a(f'buffer_load_dword {v(vO+32+h)}, {v(vL4)}, {s(rWS,4)}, {s(sOA)} offen offset:{h*256} sc1')
        else: a(f'buffer_load_dword {v(vG)}, {v(vGA)}, {s(rWS,4)}, {s(sT1)} offen sc1')
    cntof = lambda k: 4 if k == 8 else 1
    def ocheck(c):
        if c < 9:
            d = vO + 4 * c
            a(f'v_max3_u32 v25, {v(d)}, {v(d+1)}, {v(d+2)}')
            a(f'v_max_u32 v25, v25, {v(d+3)}')
            a('v_cmp_eq_u32 vcc, -1, v25')
        else: a(f'v_cmp_eq_u32 vcc, -1, {v(vG)}')
    for c in range(10): oload(c)
    a(f's_mov_b32 {s(sI)}, 0')
    for i in range(N):
        c, m = divmod(i, 6)
        if m == 0:
            if c <= BC: a(f's_waitcnt vmcnt({sum(cntof(k) for k in range(c + 1, 10))})')
            ocheck(c)
            a(f's_cbranch_vccnz {L}_slow{c} ;nopad')
            a.label(f'{L}_ok{c}')
            if DBG and c in (0, 4): st({0: 8, 4: 10}[c])
        if i % 2 == 0: a(f's_waitcnt lgkmcnt({2*(issued - i - 2)})')
        slot = vA + 4 * (i % NSLOT)
        a(f'v_mfma_f32_16x16x32_bf16 {v(vACC+4*m,4)}, {v(slot,4)}, {v(vO+4*c,4)}, {v(vACC+4*m,4) if c else 0}')
        ensure(i + 1 + LA)
        if c == BC and m == 4:
            a('s_waitcnt vmcnt(0)')
            a(f's_cmp_eq_u32 {s(sBD)}, 0')
            a(f's_cbranch_scc1 {L}_b1 ;nopad')
            btest(f'{L}_b1 ;nopad')
            bload()
            a.label(f'{L}_b1')
    st(4)
    ocheck(9)
    a(f's_cbranch_vccnz {L}_slow9')
    a.label(f'{L}_ok9')
    a(f'v_sub_f32 {v(vOMG)}, 1.0, {v(vG)}')
    a(f'v_cvt_pk_bf16_f32 {v(vOMG)}, {v(vOMG)}, {v(vOMG)}')
    a(f'v_lshlrev_b32 {v(vOMG)}, 16, {v(vOMG)}')
    a(f's_cmp_eq_u32 {s(sOH)}, 0')
    a(f's_cbranch_scc1 {L}_h0')
    for m in range(4): a(f'ds_write_b128 {v(vXA)}, {v(vACC+4*m,4)} offset:{1024*m}')
    for i in range(4): a(f'v_mov_b64 {v(vACC+2*i,2)}, {v(vACC+16+2*i,2)}')
    a(f'v_add_u32 {v(vXA)}, 4096, {v(vXA)}')
    a(f's_branch {L}_b3')
    a.label(f'{L}_h0')
    for m in range(4, 6): a(f'ds_write_b128 {v(vXA)}, {v(vACC+4*m,4)} offset:{1024*m}')
    a(f's_mov_b32 {s(sI)}, 0')
    a.label(f'{L}_b2')
    a(f's_cmp_eq_u32 {s(sBD)}, 0')
    a(f's_cbranch_scc1 {L}_b4')
    bpoll()
    a(f's_add_u32 {s(sI)}, {s(sI)}, 1')
    a(f's_cmp_ge_u32 {s(sI)}, {SPIN}')
    a(f's_cbranch_scc1 {L}_b3')
    a('s_waitcnt vmcnt(0)')
    btest(f'{L}_b2')
    a.label(f'{L}_b5')
    bload()
    a.label(f'{L}_b4')
    a('s_waitcnt vmcnt(0)')
    for i in range(3): a(f'ds_read_b128 {v(40+4*i,4)}, v24 offset:{1024*i}')
    a(f's_add_u32 {s(sI)}, {s(sI)}, 1')
    a('s_waitcnt lgkmcnt(0)')
    for i in range(4): a(f'v_max3_u32 v{40+3*i}, v{40+3*i}, v{41+3*i}, v{42+3*i}')
    a('v_max3_u32 v40, v40, v43, v46')
    a('v_max_u32 v40, v40, v49')
    a('v_cmp_eq_u32 vcc, -1, v40')
    a(f's_cbranch_vccz {L}_b3')
    a(f's_cmp_lt_u32 {s(sI)}, {SPIN}')
    a(f's_cbranch_scc1 {L}_b5')
    a.label(f'{L}_b3')
    a('s_waitcnt vmcnt(0) lgkmcnt(0)')
    if DBG: st(11)
    st.value(12, s(sI))
    a('s_barrier')
    st(5)
    vB, vX = 64, 108
    for m in range(4):
        a(f'ds_read_b128 {v(vX+4*m,4)}, {v(vXA)} offset:{1024*m}')
        a(f'ds_read_b64_tr_b16 {v(vB+2*m,2)}, {v(vBA)} offset:{m*16*128}')
    vT, vR = 80, 100
    for m in range(4):
        a(f's_waitcnt lgkmcnt({6-2*m})')
        t = vT + 4 * (m & 1)
        for h in range(2): a(f'v_pk_add_f32 {v(vX+4*m+2*h,2)}, {v(vX+4*m+2*h,2)}, {v(vACC+4*m+2*h,2)}')
        a(f'v_lshlrev_b32 {v(t)}, 16, {v(vB+2*m)}')
        a(f'v_and_b32 {v(t+1)}, 0xffff0000, {v(vB+2*m)}')
        a(f'v_lshlrev_b32 {v(t+2)}, 16, {v(vB+2*m+1)}')
        a(f'v_and_b32 {v(t+3)}, 0xffff0000, {v(vB+2*m+1)}')
        for h in range(2): a(f'v_pk_mul_f32 {v(vX+4*m+2*h,2)}, {v(vX+4*m+2*h,2)}, {v(vG-1,2)} op_sel:[0,1] op_sel_hi:[1,1]')
        for h in range(2): a(f'v_pk_fma_f32 {v(t+2*h,2)}, {v(t+2*h,2)}, {v(vOMG,2)}, {v(vX+4*m+2*h,2)} op_sel:[0,0,0] op_sel_hi:[1,0,1]')
        o = vR + 4 * (m >> 1) + 2 * (m & 1)
        a(f'v_cvt_pk_bf16_f32 {v(o)}, {v(t)}, {v(t+1)}')
        a(f'v_cvt_pk_bf16_f32 {v(o+1)}, {v(t+2)}, {v(t+3)}')
        if m & 1:
            o = vR + 4 * (m >> 1)
            a(f'v_permlane16_swap_b32 {v(o)}, {v(o+2)}')
            a(f'v_permlane16_swap_b32 {v(o+1)}, {v(o+3)}')
            a(f'buffer_store_dwordx4 {v(o,4)}, {v(vST)}, {s(rOUT,4)}, {s(sOO)} offen offset:{(m>>1)*64} {OUTF}')
            if m == 1:
                a(f's_cmp_lg_u32 {s(sOH)}, 0')
                a(f's_cbranch_scc1 {L}_end')
    a.label(f'{L}_end')
    st(6)
    if st.enabled: a('s_waitcnt vmcnt(0)')
    st(7)
    st.flush()
    a('s_endpgm')
    for c in range(10):
        a.label(f'{L}_slow{c}')
        oload(c)
        a(f's_add_u32 {s(sI)}, {s(sI)}, 1')
        a(f's_cmp_ge_u32 {s(sI)}, {SPIN}')
        a('s_waitcnt vmcnt(0)')
        a(f's_cbranch_scc1 {L}_ok{c}')
        ocheck(c)
        a(f's_cbranch_vccnz {L}_slow{c}')
        a(f's_branch {L}_ok{c}')
```

```python
import sys, os, importlib
from build import *
import gq, kern, oph
ssm = importlib.import_module(os.environ.get('SSM', 'ssm_g'))
MODE = sys.argv[2] if len(sys.argv) > 2 else ''
KW = eval(sys.argv[3]) if len(sys.argv) > 3 else {}
KO = eval(sys.argv[4]) if len(sys.argv) > 4 else {}
KC = eval(sys.argv[5]) if len(sys.argv) > 5 else {}
KL = eval(os.environ.get('KL', '{}'))
PW = eval(os.environ.get('PW', '[[], [0, 1], [2, 3], [4, 5, 6, 7, 8]]'))
def gen(a):
    full = Stamper(a, 0, bool(MODE))
    st = full
    if MODE in ('o', 'light'): st = Stamper(a, 0, 'light')
    so = Shifted(full, 1, MODE == 'o')
    kern.entry(a, st, 256)
    a('s_cmp_ge_u32 s2, 128')
    a('s_cbranch_scc1 k_ssm')
    gq.g_ids(a)
    a(f's_cmp_lt_u32 {s(sW)}, 4')
    a('s_cbranch_scc1 g_comp')
    def ids():
        a(f's_lshr_b32 {s(oph.sOR2)}, {s(gq.sHG)}, 2')
        a(f's_lshl1_add_u32 {s(oph.sOR2)}, {s(gq.sRB)}, {s(oph.sOR2)}')
        a(f's_and_b32 {s(oph.sONB)}, {s(gq.sHG)}, 3')
    def pre_f(vm, part):
        if part < 0:
            ids()
            oph.wo_setup(a)
            a(f's_mov_b32 {s(oph.sOH)}, 0')
            oph.o_setup(a)
        else: oph.wo_load(a, PW[part], vm)
    def ltail():
        a('s_setprio 0')
        so(0)
        oph.wo_load(a, PW[3])
        a('s_branch o_comp')
    def ctail():
        so(0)
        ids()
        a(f's_mov_b32 {s(oph.sOH)}, 1')
        oph.o_setup(a)
        a('s_branch o_comp')
    def stail():
        a('s_setprio 0')
        a('s_cmp_lt_u32 s3, 64')
        a('s_cbranch_scc1 s_fin')
        a('s_and_b32 s47, s3, 6')
        a('s_bfe_u32 s48, s3, 0x20003')
        a('s_lshl1_add_u32 s47, s47, s48')
        a('s_and_b32 s48, s3, 1')
        a(f's_lshl1_add_u32 {s(oph.sOR2)}, s47, s48')
        a(f's_bfe_u32 {s(oph.sONB)}, s3, 0x10005')
        a(f's_add_u32 {s(oph.sONB)}, {s(oph.sONB)}, 4')
        a(f's_lshr_b32 {s(oph.sOH)}, {s(sW)}, 2')
        a(f's_and_b32 {s(sW)}, {s(sW)}, 3')
        oph.wo_setup(a)
        a('s_barrier')
        so(0)
        a(f's_cmp_lg_u32 {s(oph.sOH)}, 0')
        a('s_cbranch_scc1 s_w2')
        oph.wo_load(a, range(5))
        a('s_branch s_w3')
        a.label('s_w2')
        oph.wo_load(a, range(5, 9))
        a.label('s_w3')
        oph.o_setup(a)
        oph.o_flags(a)
        a('s_branch o_comp')
        a.label('s_fin')
        so(0)
        full.flush()
        a('s_endpgm')
    def inter():
        a.label('k_ssm')
        a('s_sub_u32 s3, s2, 128')
        ssm.gen_ssm(a, st, tail=stail, fused=True, **KW)
        oph.gen_comp(a, so, **KO)
    gq.gen_loader(a, st, tail=ltail, pre_f=pre_f, inter=inter, **KL)
    a.label('g_comp')
    gq.gen_compute(a, st, tail=ctail, **KC)
    a.label('k_end')
    a('s_endpgm')
build([(NAME + '_kernel', gen, 256, 512, gq.G_LDS, 256)], sys.argv[1])
```

```python
from common import *

G_NWG = 128
SLOT = 40960
G_LDS = 4 * SLOT
OFF_K, OFF_V = 16384, 28672
RED = 0
FRG = 2 * SLOT + 36864
REMD = SLOT
DUM = 576 * 192
TOFF = (0, 40, 72, 112)
sRB, sHG, sT0, sT1, sT2, sI, sXB, sWB, sLX, sLW, sID = range(45, 56)
vL = 1
L = 'g'

def g_ids(a, gid='s2'):
    a(f's_lshr_b32 {s(sT1)}, {gid}, 3')
    a(f's_and_b32 {s(sT0)}, {s(sT1)}, 3')
    a(f's_lshr_b32 {s(sT1)}, {s(sT1)}, 2')
    a(f's_and_b32 {s(sRB)}, {gid}, 6')
    a(f's_lshl1_add_u32 {s(sRB)}, {s(sRB)}, {s(sT0)}')
    a(f's_and_b32 {s(sHG)}, {gid}, 1')
    a(f's_lshl2_add_u32 {s(sHG)}, {s(sHG)}, {s(sT1)}')
    a(f's_lshl4_add_u32 {s(sID)}, {s(sHG)}, {s(sRB)}')

def o_addr(a, sM, sR):
    a(f's_lshl_b32 {s(sR)}, {s(sRB)}, 2')
    a(f's_add_u32 {s(sR)}, {s(sR)}, {s(sW)}')
    a(f's_mul_i32 {s(sR)}, {s(sR)}, {2*18*1024}')
    a(f's_lshl_b32 {s(sM)}, {s(sHG)}, 11')
    a(f's_add_u32 {s(sM)}, {s(sM)}, {s(sR)}')
    a(f's_lshl_b32 {s(sT2)}, {s(sHG)}, 8')
    a(f's_add_u32 {s(sR)}, {s(sR)}, {s(sT2)}')
    a(f's_add_u32 {s(sR)}, {s(sR)}, {16*1024}')

def gen_compute(a, st, tail=None, DBG=False, Q3=False):
    st0 = st
    if DBG and DBG != 4:
        st = Stamper(a, 0, 'light'); st.keep = (1,)
    sL2 = 56
    sM1, sM2, sM3, sMG, sMO = 58, 60, 62, 64, 66
    vXA, vWA, vSH, vSQ = 2, 4, 8, 9
    vT = 10
    X0, ACC, RING = 16, 160, 232
    NS = 6
    a(f'v_and_b32 v10, 15, {v(vL)}')
    a(f'v_lshrrev_b32 v11, 4, {v(vL)}')
    a('v_lshrrev_b32 v12, 1, v10')
    a('v_xor_b32 v12, v12, v11')
    a('v_lshlrev_b32 v13, 7, v10')
    a(f's_lshl_b32 {s(sT0)}, {s(sW)}, 12')
    a(f'v_add_u32 v13, {s(sT0)}, v13')
    a(f'v_lshl_add_u32 {v(vXA)}, v12, 4, v13')
    a(f'v_xor_b32 {v(vXA+1)}, 64, {v(vXA)}')
    a(f'v_bfe_u32 v12, {v(vL)}, 2, 2')
    a('v_lshl_add_u32 v12, v11, 3, v12')
    a('v_mul_u32_u24 v12, 192, v12')
    a(f'v_and_b32 v13, 3, {v(vL)}')
    a('v_and_b32 v14, 1, v11')
    a('v_lshlrev_b32 v14, 5, v14')
    a(f's_and_b32 {s(sT0)}, {s(sHG)}, 3')
    a(f's_lshl_b32 {s(sT0)}, {s(sT0)}, 4')
    a(f'v_lshl_add_u32 v15, v13, 3, {s(sT0)}')
    for h in range(4):
        a(f'v_add_u32 v10, {TOFF[h]}, v15')
        a('v_xor_b32 v10, v10, v14')
        a(f'v_add_u32 {v(vWA+h)}, v10, v12')
    a('v_and_b32 v10, 1, v13')
    a('v_mul_u32_u24 v10, 72, v10')
    a(f'v_add3_u32 v10, v10, {s(sT0)}, 32')
    a('v_xor_b32 v10, v10, v14')
    a('v_add_u32 v10, v10, v12')
    a('v_lshrrev_b32 v13, 1, v13')
    a(f'v_mul_u32_u24 {v(vSQ)}, {OFF_V - OFF_K}, v13')
    a(f'v_add_u32 {v(vSH)}, v10, {v(vSQ)}')
    a(f's_mov_b32 {s(sL2)}, {LOG2E}')
    a(f's_mov_b32 {s(sL2+1)}, {LOG2E}')
    def mask(sreg, pred):
        m = sum(1 << l for l in range(64) if pred(l))
        a(f's_mov_b32 {s(sreg)}, {m & 0xffffffff:#x}')
        a(f's_mov_b32 {s(sreg+1)}, {m >> 32:#x}')
    owner = lambda c: c if c < 4 else ((c - 8) >> 1 if c >= 8 else 0)
    mask(sM1, lambda l: owner(l & 15) == 1); mask(sM2, lambda l: owner(l & 15) == 2); mask(sM3, lambda l: owner(l & 15) == 3)
    mask(sMG, lambda l: (l >> 4) == 1); mask(sMO, lambda l: (l & 15) < 8)
    addr_regs = [vXA, vXA + 1, vWA, vWA + 1, vWA + 2, vWA + 3, vSH]
    a('s_waitcnt lgkmcnt(0)')
    srd(a, rWS, P['ws'], WS_SIZE)
    a('s_waitcnt vmcnt(0)')
    st(1)

    class Pipe:
        def __init__(self): self.fifo = []
        def issue(self, text, tag): a(text); self.fifo.append(tag)
        def wait(self, tags):
            idx = max([i for i, t in enumerate(self.fifo) if t in tags], default=-1)
            if idx < 0: return
            n = len(self.fifo) - idx - 1
            assert n <= 15
            a(f's_waitcnt lgkmcnt({n})'); self.fifo = self.fifo[idx + 1:]
        def drain(self):
            a('s_waitcnt lgkmcnt(0)'); self.fifo = []
    PP = Pipe()
    cur_slot = [0]
    def move_slot(new, regs):
        d = (new - cur_slot[0]) * SLOT
        cur_slot[0] = new
        if d == 0: return
        for r in regs:
            if d > 0: a(f'v_add_u32 {v(r)}, {d}, {v(r)}')
            else: a(f'v_subrev_u32 {v(r)}, {-d}, {v(r)}')

    def run_phase(N, NS, loads_of, tags_of, mfmas_of, stage_of, enter_stage, DELAY=2, extra=None, pair=False):
        q = [(n, t, tag) for n in range(N) for (t, tag) in loads_of(n)]
        stage = [None]; hold = [0]; mc = 0
        def pump(k, limit, force=False):
            while q and k > 0 and q[0][0] <= limit:
                sg = stage_of(q[0][0])
                if sg != stage[0]:
                    if not force: return
                    enter_stage(sg); stage[0] = sg; hold[0] = 0
                n, t, tag = q.pop(0)
                PP.issue(t() if callable(t) else t, tag); k -= 1
        pump(99, NS - 2, True)
        for n in range(N):
            pump(99, n, True)
            tg = set(tags_of(n))
            if pair and n + 1 < N and tg & set(PP.fifo) and (not q or q[0][0] > n + 3): tg |= set(tags_of(n + 1))
            PP.wait(tg)
            for m in mfmas_of(n):
                a(m); mc += 1
                backlog = sum(1 for x in q if x[0] <= n + NS - 2)
                pump(2 if backlog > 1 else 1, n + NS - 1)
                if extra: extra(mc)
            if q and stage_of(q[0][0]) != stage[0] and q[0][0] <= n + NS - 1:
                hold[0] += 1
                if hold[0] > DELAY: pump(1, n + NS - 1, True)

    def phi_ops(pairs, tmps, pk):
        out = []
        G = len(tmps) // 2
        for j in range(0, len(pairs), G):
            grp = pairs[j:j+G]
            T = lambda k: tmps[2*k]
            for k, (r, d) in enumerate(grp):
                if pk: out.append(f'v_pk_mul_f32 {v(T(k),2)}, {v(r,2)}, {s(sL2,2)}')
                else:
                    for e in range(2): out.append(f'v_mul_f32 {v(T(k)+e)}, {s(sL2)}, {v(r+e)}')
            for k, (r, d) in enumerate(grp):
                for e in range(2):
                    out.append(f'v_exp_f32 {v(T(k)+e)}, {v(T(k)+e)} clamp')
                    out.append(f'v_max_f32 {v(r+e)}, {f32(1e-6)}, {v(r+e)}')
            for k, (r, d) in enumerate(grp):
                if pk: out.append(f'v_pk_add_f32 {v(r,2)}, {v(r,2)}, {v(T(k),2)}')
                else:
                    for e in range(2): out.append(f'v_add_f32 {v(r+e)}, {v(r+e)}, {v(T(k)+e)}')
            for k, (r, d) in enumerate(grp): out.append(f'v_cvt_pk_bf16_f32 {v(d)}, {v(r)}, {v(r+1)}')
        return out

    T8 = (5, 6, 7, 8, 4, 0, 1, 2, 3)
    kvg = [(i, kk, T) for i in range(8) for kk in range(2) for T in range(9)] + [(8, kk, T) for T in T8 for kk in range(2)]
    xreg = lambda i, kk, rt: X0 + ((2 * i + kk) * 2 + rt) * 4
    def kv_loads(n):
        i, kk, T = kvg[n]
        out = []
        if T == (0 if i < 8 else T8[0]):
            for rt in range(2):
                out.append((f'ds_read_b128 {v(xreg(i,kk,rt),4)}, {v(vXA+kk)} offset:{2048*rt}', ('x', i, kk)))
        slot = RING + 4 * (n % NS)
        if T < 4: reg, so = vWA + T, OFF_K
        elif T == 4: reg, so = vSH, OFF_K
        else: reg, so = vWA + T - 5, OFF_V
        for rd in range(2):
            out.append((f'ds_read_b64_tr_b16 {v(slot+2*rd,2)}, {v(reg)} offset:{so + (32*kk + 4*rd)*192}', ('w', n)))
        return out
    def kv_mfmas(n):
        i, kk, T = kvg[n]
        slot = RING + 4 * (n % NS)
        out = []
        for rt in range(2):
            d = v(ACC + 8 * T + 4 * rt, 4)
            out.append(f'v_mfma_f32_16x16x32_bf16 {d}, {v(xreg(i,kk,rt),4)}, {v(slot,4)}, {d if (i or kk) else 0}')
        return out
    def kv_enter(sg):
        if DBG == 3 and 3 <= sg <= 8: st0(2 * sg - 4)
        a('s_barrier')
        if DBG == 3 and 3 <= sg <= 8: st0(2 * sg - 3)
        move_slot(sg % 4, addr_regs)
        if sg in ((0, 1, 4, 8) if DBG != 4 else (0, 8)): st({0:2, 1:3, 4:4, 8:5}[sg])
        if DBG == 1: st0(2 + sg)
    base = lambda T: ACC + 8 * T
    BS = vT + 2
    MAIN = lambda h: base(5 + h) + 4
    COL = lambda h: RING + 4 * h
    ROW = lambda h: base(h) + 4
    SS = base(4) + 4
    vq = VQ(a)
    done = lambda T: 288 + 4 * (T8.index(T) + 1) + 2
    vq.add(f'v_mov_b32 {v(vT+1)}, 0x3f803f80', 289)
    vq.add(f's_mul_i32 {s(sT0)}, {s(sW)}, 6144', 289)
    vq.add(f'v_lshl_add_u32 {v(vT)}, {v(vL)}, 4, {s(sT0)}', 289)
    for h in range(4):
        for p in range(4): vq.add(f'v_cvt_pk_bf16_f32 {v(base(5+h)+p)}, {v(base(5+h)+2*p)}, {v(base(5+h)+2*p+1)}', done(5 + h))
    for p in range(4): vq.add(f'v_cvt_pk_bf16_f32 {v(BS+p)}, {v(base(4)+2*p)}, {v(base(4)+2*p+1)}', done(4))
    for p in range(4): vq.add(f'v_cndmask_b32 {v(BS+p)}, {v(BS+p)}, {v(vT+1)}, {s(sMO,2)}')
    run_phase(len(kvg), NS, kv_loads, lambda n: [('w', n), ('x', kvg[n][0], kvg[n][1])], kv_mfmas, lambda n: kvg[n][0], kv_enter,
              extra=lambda m: vq.emit(m, 4 if m < 314 else 8))
    vq.flush()
    a('s_barrier')
    if DBG in (1, 2): st0(11 if DBG == 1 else 2)
    st(6)
    mf = lambda d, x, y: a(f'v_mfma_f32_16x16x32_bf16 {v(d,4)}, {v(x,4)}, {v(y,4)}, 0')
    tm = [MAIN(h) + i for h in range(4) for i in range(4)] + list(range(RING, RING + 4))
    for k_, t_ in enumerate(phi_ops([(base(h) + 2 * p, base(h) + p) for h in (4, 0, 1, 2, 3) for p in range(4)], tm, True)):
        a(t_)
        if DBG == 2 and k_ in (9, 49, 69, 79, 119, 139): st0({9: 3, 49: 4, 69: 5, 79: 6, 119: 7, 139: 8}[k_])
    qregs = [vWA, vWA + 1, vWA + 2, vWA + 3, vSH]
    fill = [f'v_sub_u32 {v(vSH)}, {v(vSH)}, {v(vSQ)}'] + [f'v_add_u32 {v(r)}, {SLOT}, {v(r)}' for r in qregs]
    cur_slot[0] = 1
    def fl(n):
        for _ in range(n):
            if fill: a(fill.pop(0))
    for h in range(4):
        mf(ROW(h), base(4), base(5 + h)); fl(2)
    mf(SS, base(4), BS)
    for h in range(4):
        mf(COL(h), base(h), BS)
        if h == 1:
            for r in range(2): a(f'v_cndmask_b32 {v(ROW(0)+r)}, {v(ROW(0)+r)}, {v(ROW(2)+r)}, {s(sMG,2)}')
        if h == 2:
            for r in range(2, 4): a(f'v_cndmask_b32 {v(ROW(0)+r)}, {v(ROW(1)+r)}, {v(ROW(3)+r)}, {s(sMG,2)}')
        if h == 3:
            for r in range(2): a(f'v_permlane32_swap_b32 {v(ROW(0)+r)}, {v(SS+r)}')
    cm = [f'v_cndmask_b32 {v(COL(0)+r)}, {v(COL(0)+r)}, {v(COL(h)+r)}, {s(m,2)}' for h, m in ((1, sM1), (2, sM2), (3, sM3)) for r in range(4)]
    mf(MAIN(0), base(0), base(5))
    for r in range(2, 4): a(f'v_permlane32_swap_b32 {v(ROW(0)+r)}, {v(SS+r)}')
    mf(MAIN(1), base(1), base(6))
    a(cm.pop(0)); a(cm.pop(0))
    mf(MAIN(2), base(2), base(7))
    a(f'ds_write_b128 {v(vT)}, {v(ROW(0),4)} offset:{RED + 5120}')
    a(cm.pop(0))
    mf(MAIN(3), base(3), base(8))
    if DBG == 2: st0(9)
    for k, t_ in enumerate(cm):
        a(t_)
        if k in (1, 4, 7): a(f'ds_write_b128 {v(vT)}, {v(MAIN(k // 3),4)} offset:{RED + 1024*(k // 3)}')
    a(f'ds_write_b128 {v(vT)}, {v(MAIN(3),4)} offset:{RED + 3072}')
    a(f'ds_write_b128 {v(vT)}, {v(COL(0),4)} offset:{RED + 4096}')
    a('s_waitcnt lgkmcnt(0)')
    st(7)
    if DBG == 2: st0(10)
    a('s_barrier')
    if DBG in (1, 2): st0(12)
    st(8)
    TORD = (4, 0, 1, 2, 3)
    NQ = 8
    QR = lambda n: RING - 8 + 4 * (n % NQ)
    qg = [(i, kk, T) for i in range(6) for kk in range(2) for T in range(5)] + [(i, kk, T) for T in TORD for i in range(6, 9) for kk in range(2)]
    QA = lambda T, rt: ACC + (2 * T + rt) * 4
    def q_loads(n):
        i, kk, T = qg[n]
        return [(f'ds_read_b64_tr_b16 {v(QR(n)+2*rd,2)}, {v(qregs[T])} offset:{(i%3)*12288 + (32*kk + 4*rd)*192}', ('w', n)) for rd in range(2)]
    def q_mfmas(n):
        i, kk, T = qg[n]
        out = []
        for rt in range(2):
            d = v(QA(T, rt), 4)
            out.append(f'v_mfma_f32_16x16x32_bf16 {d}, {v(QR(n),4)}, {v(xreg(i,kk,rt),4)}, {d if (i or kk) else 0}')
        return out
    def q_enter(sg):
        if sg:
            if sg == 1 or Q3: a('s_barrier')
            if DBG == 4: st0(2 + sg)
            move_slot(1 + sg, qregs)
    tq = list(range(ACC + 40, ACC + 48))
    for k, T in enumerate(TORD):
        for t_ in phi_ops([(QA(T, rt) + 2 * p, QA(T, rt) + p) for rt in range(2) for p in range(2)], tq, k == 4): vq.add(t_, 120 + 12 * (k + 1) + 2)
        if T < 4:
            for rt in range(2):
                for e in range(2): vq.add(f'v_mov_b32 {v(QA(T,rt)+2+e)}, {v(QA(4,rt)+e)}')
    run_phase(len(qg), NQ, q_loads, lambda n: [('w', n)], q_mfmas, lambda n: n // 30, q_enter, DELAY=2, extra=lambda m: vq.emit(m, 16), pair=True)
    st(9)
    o_addr(a, sT1, sT0)
    a(f'v_lshlrev_b32 {v(vT)}, 4, {v(vL)}')
    a(f'v_add_u32 {v(vT+1)}, {18*1024}, {v(vT)}')
    a(f'v_lshlrev_b32 {v(vT+2)}, 2, {v(vL)}')
    a(f'v_add_u32 {v(vT+3)}, {18*1024}, {v(vT+2)}')
    a(f'v_add_u32 {v(vT+4)}, {FRG}, {v(vT)}')
    vq.flush()
    st(10)
    a('s_barrier')
    st(11)
    FR = 16; NUMO = 48; REMO = 80; RC = 88; OUT = 104
    for f in (4, 5, 6, 7, 0, 1, 2, 3):
        a(f'ds_read_b128 {v(FR+4*f,4)}, {v(vT+4)} offset:{REMD*(f>>2) + 1024*(f&3)}')
    for h in range(4):
        a(f's_waitcnt lgkmcnt({7-h})')
        for rt in range(2):
            d = v(REMO + 4 * rt, 4)
            a(f'v_mfma_f32_16x16x32_bf16 {d}, {v(FR+16+4*h,4)}, {v(QA(h,rt),4)}, {d if h else 0}')
    rc = []
    def both(fn):
        for rt in range(2): rc.append(fn(RC + 8 * rt, REMO + 4 * rt + 2))
    both(lambda r, dn: f'v_cvt_pk_bf16_f32 {v(r)}, {v(dn)}, {v(dn)}')
    both(lambda r, dn: f'v_lshlrev_b32 {v(r)}, 16, {v(r)}')
    both(lambda r, dn: f'v_add_f32 {v(r)}, {f32(1e-6)}, {v(r)}')
    both(lambda r, dn: f'v_cvt_pk_bf16_f32 {v(r)}, {v(r)}, {v(r)}')
    both(lambda r, dn: f'v_lshlrev_b32 {v(r)}, 16, {v(r)}')
    both(lambda r, dn: f'v_rcp_f32 {v(r+4)}, {v(r)}')
    both(lambda r, dn: f'v_mov_b32 {v(r)}, {v(r+4)}')
    both(lambda r, dn: f'v_mov_b32 {v(r+1)}, {v(r+4)}')
    both(lambda r, dn: f'v_permlane16_swap_b32 {v(r)}, {v(r+1)}')
    both(lambda r, dn: f'v_mov_b32 {v(r+2)}, {v(r)}')
    both(lambda r, dn: f'v_mov_b32 {v(r+3)}, {v(r+1)}')
    both(lambda r, dn: f'v_permlane32_swap_b32 {v(r)}, {v(r+2)}')
    both(lambda r, dn: f'v_permlane32_swap_b32 {v(r+1)}, {v(r+3)}')
    k = 0
    for h in range(4):
        a(f's_waitcnt lgkmcnt({3-h})')
        for rt in range(2):
            a(f'v_mfma_f32_16x16x32_bf16 {v(NUMO+(2*h+rt)*4,4)}, {v(FR+4*h,4)}, {v(QA(h,rt),4)}, 0')
            k += 1
            if k >= 2:
                for _ in range(4):
                    if rc: a(rc.pop(0))
    for t in rc: a(t)
    for rt in range(2):
        r = RC + 8 * rt; o = OUT + 12 * rt
        for h in range(4):
            n = NUMO + (2 * h + rt) * 4
            sel = f'op_sel:[0,{h&1}] op_sel_hi:[1,{h&1}]'
            a(f'v_pk_mul_f32 {v(n,2)}, {v(n,2)}, {v(r+(h&2),2)} {sel}')
            a(f'v_pk_mul_f32 {v(n+2,2)}, {v(n+2,2)}, {v(r+(h&2),2)} {sel}')
            a(f'v_cvt_pk_bf16_f32 {v(o+2*h)}, {v(n)}, {v(n+1)}')
            a(f'v_cvt_pk_bf16_f32 {v(o+2*h+1)}, {v(n+2)}, {v(n+3)}')
            if h & 1:
                a(f'buffer_store_dwordx4 {v(o+2*h-2,4)}, {v(vT+rt)}, {s(rWS,4)}, {s(sT1)} offen offset:{(h>>1)*1024} sc1')
        n = REMO + 4 * rt
        a(f'v_pk_mul_f32 {v(n,2)}, {v(n,2)}, {v(r+4,2)} op_sel:[0,0] op_sel_hi:[1,0]')
        a(f'v_cvt_pk_bf16_f32 {v(o+8)}, {v(n)}, {v(n+1)}')
        a(f'buffer_store_dword {v(o+8)}, {v(vT+2+rt)}, {s(rWS,4)}, {s(sT0)} offen sc1')
    st(12)
    if tail: tail()
    else:
        if st.enabled: a('s_waitcnt vmcnt(0)')
        st(13)
        st.flush()
        a('s_endpgm')

vTAG = 28
def gen_loader(a, st0, tail=None, pre_f=None, DBG=False, inter=None, P3=99, NOG=False, ORD='gowp', UF=2, UH=False):
    st = st0
    sd = (lambda k: st0(k)) if DBG == 1 else (lambda k: None)
    sPI, sOM, sOR, sPS, sP0 = 56, 64, 65, 58, 66
    a('s_setprio 3')
    a(f's_sub_u32 {s(sW)}, {s(sW)}, 4')
    VX, VW = 4, 8
    a(f'v_lshrrev_b32 v2, 3, {v(vL)}')
    a('v_mul_u32_u24 v2, 1152, v2')
    a(f'v_and_b32 v3, 7, {v(vL)}')
    a(f'v_lshrrev_b32 v12, 4, {v(vL)}')
    a('v_xor_b32 v3, v3, v12')
    a(f'v_lshl_add_u32 {v(VX)}, v3, 4, v2')
    a(f'v_xor_b32 {v(VX+1)}, 64, {v(VX)}')
    a(f'v_add_u32 {v(VX+2)}, {2*(9216-1024)}, {v(VX)}')
    a(f'v_add_u32 {v(VX+3)}, {3*(9216-1024)}, {v(VX+1)}')
    a(f'v_add_u32 {v(VX+1)}, {9216-1024}, {v(VX+1)}')
    a(f's_mov_b32 {s(sT0)}, 0x5556')
    for i in range(3):
        a(f'v_add_u32 v3, {64*i}, {v(vL)}')
        a('v_lshrrev_b32 v12, 2, v3')
        a(f'v_mul_u32_u24 v13, {s(sT0)}, v12')
        a('v_lshrrev_b32 v13, 16, v13')
        a('v_mul_u32_u24 v14, 12, v13')
        a('v_sub_u32 v14, v3, v14')
        a('v_lshrrev_b32 v15, 2, v13')
        a('v_and_b32 v15, 2, v15')
        a('v_xor_b32 v14, v14, v15')
        a('v_mul_u32_u24 v13, 3456, v13')
        a(f'v_lshl_add_u32 {v(VW+i)}, v14, 4, v13')
        if i: a(f'v_subrev_u32 {v(VW+i)}, {1024*i}, {v(VW+i)}')
    a(f's_lshl2_add_u32 {s(sT0)}, {s(sRB)}, {s(sW)}')
    a(f's_mul_i32 {s(sXB)}, {s(sT0)}, {32*1152}')
    a(f's_mul_i32 {s(sWB)}, {s(sHG)}, 144')
    a(f's_and_b32 {s(sWB)}, {s(sWB)}, 0xffc0')
    a(f's_mul_i32 {s(sT0)}, {s(sW)}, {16*3456}')
    a(f's_add_u32 {s(sWB)}, {s(sWB)}, {s(sT0)}')
    a(f's_lshl_b32 {s(sLX)}, {s(sW)}, 12')
    a(f's_mul_i32 {s(sLW)}, {s(sW)}, 3072')
    sXK, sWK = 64, 65
    def kblock(t, x=True):
        if t == 0 or not UH:
            b_ = 8 if UH else t
            if x: a(f's_add_u32 {s(sXK)}, {s(sXB)}, {128*b_}')
            a(f's_add_u32 {s(sWK)}, {s(sWB)}, {b_*64*3456}')
            return
        a(f's_add_u32 {s(sT0)}, {s(sHG)}, {t-1}')
        a(f's_and_b32 {s(sT0)}, {s(sT0)}, 7')
        a(f's_mul_i32 {s(sWK)}, {s(sT0)}, {64*3456}')
        if x:
            a(f's_lshl_b32 {s(sT0)}, {s(sT0)}, 7')
            a(f's_add_u32 {s(sXK)}, {s(sXB)}, {s(sT0)}')
        a(f's_add_u32 {s(sWK)}, {s(sWK)}, {s(sWB)}')
    kblock(0)
    a('s_waitcnt lgkmcnt(0)')
    srd(a, rX, P['x'], XB); srd(a, rW, P['wqkv'], WB)
    fifo = []
    def vm(text, tag): a(text); fifo.append(tag)
    def vwait(tag, extra=''):
        idx = max(i for i, t in enumerate(fifo) if t == tag)
        a(f's_waitcnt vmcnt({len(fifo) - idx - 1}){extra}')
        del fifo[:idx + 1]
    def issue(k, mid=None):
        sl = (k % 4) * SLOT
        a(f's_add_u32 m0, {s(sLX)}, {sl}')
        for i in range(4): vm(f'buffer_load_dwordx4 {v(VX+i)}, {s(rX,4)}, {s(sXK)} offen offset:{1024*i} lds', k)
        if mid: mid()
        a(f's_add_u32 {s(sT1)}, {s(sWK)}, 1152')
        a(f's_add_u32 m0, {s(sLW)}, {sl + OFF_K}')
        a(f's_add_u32 {s(sT0)}, {s(sWK)}, 2304')
        for i in range(3): vm(f'buffer_load_dwordx4 {v(VW+i)}, {s(rW,4)}, {s(sT1)} offen offset:{1024*i} lds', k)
        a(f's_add_u32 m0, {s(sLW)}, {sl + OFF_V}')
        for i in range(3): vm(f'buffer_load_dwordx4 {v(VW+i)}, {s(rW,4)}, {s(sT0)} offen offset:{1024*i} lds', k)
        kblock((k + 1) % 9, k < 8)
    def issue_q(j, mid=None):
        for b in range(3):
            a(f's_add_u32 m0, {s(sLW)}, {(j+1)*SLOT + 12288*b}')
            for i in range(3): vm(f'buffer_load_dwordx4 {v(VW+i)}, {s(rW,4)}, {s(sWK)} offen offset:{1024*i} lds', f'q{j}')
            if 3 * j + b < 8: kblock(3 * j + b + 1, False)
            if b == 0 and mid: mid()
    GW, GA, GX = 32, 50, 54
    def add2(d, x, y, op='add'):
        for e in range(2): a(f'v_{op}_f32 {v(d+e)}, {v(x+e)}, {v(y+e)}')
    issue(0)
    if inter:
        a(f's_branch {L}_l2')
        inter()
        a.label(f'{L}_l2')
    st(1)
    a(f'v_and_b32 v11, 15, {v(vL)}')
    a('v_lshlrev_b32 v12, 3, v11')
    vL16, vS = 2, 76
    a(f'v_lshlrev_b32 {v(vL16)}, 4, {v(vL)}')
    a(f's_lshl2_add_u32 {s(sPS)}, {s(sID)}, {s(sW)}')
    a(f's_mul_i32 {s(sPS)}, {s(sPS)}, 1536')
    a(f's_add_u32 {s(sPS)}, {s(sPS)}, {WS_P:#x}')
    vL16, vH8, vHP, vGA, vD0, vFL, vRD, vRH, vGS, vO1 = 2, 3, 16, 17, 22, 23, 24, 25, 26, 27
    def consts():
        a(f'v_and_b32 v13, 31, {v(vL)}')
        a(f'v_lshrrev_b32 v14, 5, {v(vL)}')
        a('v_lshlrev_b32 v13, 4, v13')
        a(f'v_lshl_add_u32 {v(vH8)}, v14, 3, v13')
        a('v_mul_u32_u24 v14, 6144, v14')
        a(f'v_add_u32 {v(vHP)}, v14, v13')
        a(f's_lshl2_add_u32 {s(sT0)}, {s(sHG)}, {s(sW)}')
        a(f's_lshl_b32 {s(sT0)}, {s(sT0)}, 2')
        a(f'v_lshrrev_b32 v21, 4, {v(vL)}')
        a(f'v_add_u32 v13, {s(sT0)}, v21')
        a(f's_lshl_b32 {s(sT1)}, {s(sRB)}, 9')
        a(f'v_lshl_add_u32 {v(vGS)}, v13, 2, {s(sT1)}')
        a('v_bfe_u32 v14, v13, 1, 3')
        a('v_lshrrev_b32 v15, 1, v11')
        a('v_xor_b32 v14, v14, v15')
        a('v_lshlrev_b32 v13, 7, v13')
        a('v_lshl_add_u32 v13, v14, 4, v13')
        a('v_and_b32 v14, 1, v11')
        a(f'v_lshl_add_u32 {v(vGA)}, v14, 3, v13')
        a(f'v_add_u32 {v(vGA+1)}, {2*SLOT}, {v(vGA)}')
        a(f's_lshl_b32 {s(sT0)}, {s(sHG)}, 4')
        a(f'v_add_u32 v13, {s(sT0)}, {v(vL)}')
        a(f'v_and_b32 v14, 7, {v(vL)}')
        a(f'v_lshl_add_u32 v14, v14, 4, {s(sRB)}')
        a(f'v_cmp_gt_u32 vcc, 16, {v(vL)}')
        a('v_cndmask_b32 v13, v14, v13, vcc')
        a(f'v_lshlrev_b32 {v(vFL)}, 7, v13')
        a(f's_and_b32 {s(sPI)}, {s(sW)}, 1')
        a(f's_lshl_b32 {s(sT0)}, {s(sW)}, 10')
        a(f'v_add_u32 {v(vRD)}, {s(sT0)}, {v(vL16)}')
        a(f's_lshr_b32 {s(sT0)}, {s(sW)}, 1')
        a(f's_lshl_b32 {s(sT0)}, {s(sT0)}, 10')
        a(f's_lshl3_add_u32 {s(sT0)}, {s(sPI)}, {s(sT0)}')
        a(f'v_add_u32 {v(vRH)}, {s(sT0)}, {v(vL16)}')
        for i in range(4): a(f'v_mov_b32 {v(GA+i)}, 0')

        scatter_addr()
    def scatter_addr():
        vC, vGg = 11, 21
        t = list(range(64, 74))
        a(f'v_subrev_u32 v{t[0]}, 8, {v(vC)}')
        a(f'v_ashrrev_i32 v{t[0]}, 1, v{t[0]}')
        a(f'v_and_b32 v{t[1]}, 1, {v(vC)}')
        a(f'v_mov_b32 v{t[2]}, {DUM}')
        a(f's_lshl_b32 {s(sT0)}, {s(sPI)}, 2')
        a(f's_cmp_ge_u32 {s(sW)}, 2')
        a(f's_cbranch_scc1 {L}_sc1')
        a(f'v_cmp_gt_u32 vcc, 8, {v(vC)}')
        a(f'v_cndmask_b32 v{t[3]}, v{t[0]}, {v(vC)}, vcc')
        a(f'v_cndmask_b32 v{t[4]}, v{t[1]}, 2, vcc')
        a(f'v_mul_u32_u24 v{t[3]}, {1024 + 64}, v{t[3]}')
        a(f'v_lshl_add_u32 v{t[3]}, v{t[4]}, 4, v{t[3]}')
        a(f'v_lshl_add_u32 v{t[3]}, {v(vGg)}, 8, v{t[3]}')
        a(f's_add_u32 {s(sT0)}, {s(sT0)}, {FRG + REMD}')
        a(f'v_add_u32 v{t[3]}, {s(sT0)}, v{t[3]}')
        a(f'v_and_b32 v{t[4]}, 12, {v(vC)}')
        a(f'v_cmp_eq_u32 vcc, 4, v{t[4]}')
        a(f'v_cndmask_b32 {v(vD0)}, v{t[3]}, v{t[2]}, vcc')
        a(f's_branch {L}_sc2')
        a.label(f'{L}_sc1')
        a(f'v_and_b32 v{t[3]}, 1, {v(vGg)}')
        a(f'v_lshl_add_u32 v{t[4]}, v{t[3]}, 1, {s(sPI)}')
        a(f'v_lshlrev_b32 v{t[5]}, 10, v{t[4]}')
        a(f'v_lshl_add_u32 v{t[5]}, v{t[3]}, 8, v{t[5]}')
        a(f's_add_u32 {s(sT0)}, {s(sT0)}, {FRG + 8}')
        a(f'v_add_u32 v{t[5]}, {s(sT0)}, v{t[5]}')
        a(f'v_lshl_add_u32 v{t[6]}, {v(vC)}, 4, v{t[5]}')
        a(f'v_lshl_add_u32 v{t[7]}, v{t[4]}, 6, v{t[5]}')
        a(f'v_add_u32 v{t[7]}, {REMD}, v{t[7]}')
        a(f'v_lshl_add_u32 v{t[8]}, v{t[1]}, 4, v{t[7]}')
        a(f'v_cmp_eq_u32 vcc, v{t[0]}, v{t[4]}')
        a(f'v_cndmask_b32 v{t[8]}, v{t[2]}, v{t[8]}, vcc')
        a(f'v_add_u32 v{t[7]}, 32, v{t[7]}')
        a(f'v_cmp_eq_u32 vcc, 0, {v(vC)}')
        a(f'v_cndmask_b32 v{t[8]}, v{t[8]}, v{t[7]}, vcc')
        a(f'v_cmp_gt_u32 vcc, 32, {v(vL)}')
        a(f'v_cndmask_b32 {v(vD0)}, v{t[8]}, v{t[6]}, vcc')
        a.label(f'{L}_sc2')
    gx = lambda k: (GX if k >= 2 else 80) + 2 * (k & 1)
    def gate_read(k):
        sl = k % 4
        a(f'ds_read_b64 {v(gx(k),2)}, {v(vGA + (sl >> 1))} offset:{(sl & 1) * SLOT}')
    def gate_acc(k):
        x = gx(k); t = 58
        for d in range(2):
            a(f'v_lshlrev_b32 {v(t+4*d)}, 16, {v(x+d)}')
            a(f'v_and_b32 {v(t+4*d+1)}, 0xffff0000, {v(x+d)}')
            a(f'v_lshlrev_b32 {v(t+4*d+2)}, 16, {v(GW+2*k+d)}')
            a(f'v_and_b32 {v(t+4*d+3)}, 0xffff0000, {v(GW+2*k+d)}')
        for d in range(2): add2(t+4*d, t+4*d, t+4*d+2, 'mul')
        for d in range(2): a(f'v_cvt_pk_bf16_f32 {v(t+4*d+2)}, {v(t+4*d)}, {v(t+4*d+1)}')
        for d in range(2):
            a(f'v_lshlrev_b32 {v(t+4*d)}, 16, {v(t+4*d+2)}')
            a(f'v_and_b32 {v(t+4*d+1)}, 0xffff0000, {v(t+4*d+2)}')
        for d in range(2): add2(GA+2*d, GA+2*d, t+4*d, 'add')
    vS = 12
    consts()
    if pre_f: pre_f(None, -1)
    sd(2)
    sd(3)
    issue(1)
    sd(11)
    if DBG:
        st = Stamper(a, 0, 'light'); st.keep = ()
    vS = 12
    srd(a, rWS, P['ws'], WS_SIZE)
    a('v_mov_b32 v30, 0')
    vUT, vUS, vUD, sUS = 84, 88, 96, 3
    def usetup():
        a(f'v_bfe_u32 v13, {v(vL)}, 2, 2')
        a('v_lshl_add_u32 v14, v21, 3, v13')
        a(f'v_lshl_add_u32 v14, v14, 7, {s(sLX)}')
        a(f'v_lshrrev_b32 v15, 2, {v(vL)}')
        a(f'v_xor_b32 v15, v15, {v(vL)}')
        a('v_and_b32 v15, 2, v15')
        a('v_lshl_add_u32 v14, v15, 3, v14')
        a(f'v_and_b32 v15, 1, {v(vL)}')
        a('v_lshl_add_u32 v14, v15, 3, v14')
        a('v_and_b32 v13, 1, v21')
        a(f'v_lshl_add_u32 {v(vUT)}, v13, 6, v14')
        for i in range(1, 4): a(f'v_xor_b32 {v(vUT+i)}, {32*i}, {v(vUT)}')
        a(f's_lshr_b32 {s(sT0)}, {s(sHG)}, 1')
        a(f's_lshl_b32 {s(sT0)}, {s(sT0)}, 5')
        a(f'v_xor_b32 {v(vUS+1)}, {s(sT0)}, {v(vUT)}')
        a(f'v_xor_b32 {v(vUS+2)}, 32, {v(vUS+1)}')
        a(f's_lshl2_add_u32 {s(sUS)}, {s(sRB)}, {s(sW)}')
        a(f's_lshl_b32 {s(sUS)}, {s(sUS)}, 10')
        a(f's_add_u32 {s(sUS)}, {s(sUS)}, {WS_U:#x}')
    if UH: usetup()
    def uread(k):
        if k == 0:
            for rd in range(2): a(f'ds_read_b64_tr_b16 {v(vUD+16+2*rd,2)}, {v(vUS+1+rd)} offset:{512*rd}')
        else:
            for j in range(4):
                for rd in range(2): a(f'ds_read_b64_tr_b16 {v(vUD+4*j+2*rd,2)}, {v(vUT + (j ^ rd))} offset:{SLOT + 512*rd}')
    def ustore(k):
        if k == 0:
            a(f's_and_b32 {s(sT0)}, {s(sHG)}, 6')
            a(f's_add_u32 {s(sT0)}, {s(sT0)}, 64')
            a(f's_lshl_b32 {s(sT0)}, {s(sT0)}, 15')
            a(f's_bitcmp1_b32 {s(sHG)}, 0')
            a(f's_cselect_b32 {s(sT1)}, 8, 0')
            a(f's_lshl_b32 exec_lo, 0x00ff00ff, {s(sT1)}')
            a('s_mov_b32 exec_hi, exec_lo')
        else: a(f's_lshl_b32 {s(sT0)}, {s(sHG)}, 18')
        a(f's_add_u32 {s(sT0)}, {s(sT0)}, {s(sUS)}')
        a('s_waitcnt lgkmcnt(0)')
        for j in ([4] if k == 0 else range(4)):
            vm(f'buffer_store_dwordx4 {v(vUD+4*j,4)}, {v(vL16)}, {s(rWS,4)}, {s(sT0)} offen sc1', 'u')
            if j < 3: a(f's_add_u32 {s(sT0)}, {s(sT0)}, 0x10000')
        if k == 0: a('s_mov_b64 exec, -1')
    def uflag():
        vwait('u')
        a(f's_mov_b32 {s(sI)}, 0')
        a.label(f'{L}_ut')
        a(f'v_cmp_ne_u32 vcc, 0, {v(vTAG)}')
        a(f's_cbranch_vccnz {L}_ut1')
        a(f'global_load_dwordx2 {v(vTAG,2)}, v30, {s(P["dbg"],2)} sc1')
        a(f's_add_u32 {s(sI)}, {s(sI)}, 1')
        a(f's_cmp_lt_u32 {s(sI)}, {SPIN}')
        a('s_waitcnt vmcnt(0)')
        a(f's_cbranch_scc1 {L}_ut')
        a.label(f'{L}_ut1')
        a(f's_lshl4_add_u32 {s(sT0)}, {s(sHG)}, {s(sRB)}')
        a(f's_lshl4_add_u32 {s(sT0)}, {s(sT0)}, {s(sW)}')
        a(f's_lshl3_add_u32 {s(sT0)}, {s(sT0)}, {WS_FU:#x}')
        a('s_mov_b64 exec, 1')
        vm(f'buffer_store_dwordx2 {v(vTAG,2)}, v30, {s(rWS,4)}, {s(sT0)} offen sc1', 'uf')
        a('s_mov_b64 exec, -1')
    for k in range(9):
        if DBG == 3 and 3 <= k <= 8: st0(2 * k - 4)
        vwait(k)
        if DBG == 3 and 3 <= k <= 8: st0(2 * k - 3)
        a('s_barrier')
        if k: gate_read(k - 1)
        if k == 8: gate_read(8)
        if UH and k < 2: uread(k)
        def mid():
            for j in (2 * k, 2 * k + 1):
                if not UH:
                    if j < 9: vm(f'global_load_dwordx2 {v(GW+2*j,2)}, v12, {s(P["gw"],2)} offset:{128*j}', f'gw{j}')
                elif j == 0: vm(f'global_load_dwordx2 {v(GW,2)}, v12, {s(P["gw"],2)} offset:1024', 'gw0')
                elif j < 9:
                    a(f's_add_u32 {s(sT0)}, {s(sHG)}, {j-1}')
                    a(f's_and_b32 {s(sT0)}, {s(sT0)}, 7')
                    a(f'v_lshl_add_u32 v{13+(j&1)}, {s(sT0)}, 7, v12')
                    vm(f'global_load_dwordx2 {v(GW+2*j,2)}, v{13+(j&1)}, {s(P["gw"],2)}', f'gw{j}')
            if k == (0 if UH else 5): vm(f'global_load_dwordx2 {v(vTAG,2)}, v30, {s(P["dbg"],2)} sc1', 'tag')
            if UH and k < 2 and UF < 99: ustore(k)
            if k >= 2:
                a('s_waitcnt lgkmcnt(0)')
                for j in ([0, 1] if k == 2 else [7, 8] if k == 8 else [k - 1]):
                    assert f'gw{j}' not in fifo
                    if not NOG: gate_acc(j)
        if k <= 6: issue(k + 2, mid)
        else: issue_q(k - 7, mid)
        if UH and k == UF: uflag()
    st(4)
    a('s_barrier')
    st(5)
    a(f's_mov_b32 {s(sT2)}, {WS_F:#x}')
    vF = 18
    vm(f'buffer_load_dwordx2 {v(vF,2)}, {v(vFL)}, {s(rWS,4)}, {s(sT2)} offen sc1', 'fl')
    issue_q(2)
    for i in range(4): a(f'v_mov_b32 {v(vS+i)}, 0')
    a(f'v_add_u32 {v(vO1)}, {FRG}, {v(vRD)}')
    a(f'ds_write_b128 {v(vO1)}, {v(vS,4)}')
    a(f'ds_write_b128 {v(vO1)}, {v(vS,4)} offset:{REMD}')
    vwait('q0', ' lgkmcnt(0)')
    st(7)
    a('s_barrier')
    st(8)
    S0 = 64
    for w in range(4):
        a(f'ds_read_b128 {v(S0+6*w,4)}, {v(vRD)} offset:{RED + 6144*w}')
        a(f'ds_read_b64 {v(S0+6*w+4,2)}, {v(vRH)} offset:{RED + 6144*w + 4096}')
    a('s_waitcnt lgkmcnt(4)')
    for p in range(3): add2(S0+2*p, S0+2*p, S0+6+2*p, 'add')
    a('s_waitcnt lgkmcnt(0)')
    for p in range(3): add2(S0+12+2*p, S0+12+2*p, S0+18+2*p, 'add')
    for p in range(3): add2(S0+2*p, S0+2*p, S0+12+2*p, 'add')
    a(f's_mov_b32 {s(sI)}, 0')
    vwait('fl')
    a.label(f'{L}_fl')
    a(f'v_cmp_ne_u64 vcc, {v(vF,2)}, {v(vTAG,2)}')
    a(f'v_cmp_eq_u32 {s(64,2)}, 0, {v(vTAG)}')
    a(f's_or_b64 vcc, vcc, {s(64,2)}')
    a(f's_cbranch_scc0 {L}_flok')
    a(f'global_load_dwordx2 {v(vTAG,2)}, v30, {s(P["dbg"],2)} sc1')
    a(f'buffer_load_dwordx2 {v(vF,2)}, {v(vFL)}, {s(rWS,4)}, {s(sT2)} offen sc1')
    a(f's_add_u32 {s(sI)}, {s(sI)}, 1')
    a(f's_cmp_lt_u32 {s(sI)}, {SPIN}')
    a('s_waitcnt vmcnt(0)')
    a(f's_cbranch_scc1 {L}_fl')
    a.label(f'{L}_flok')
    vm(f'buffer_store_dwordx4 {v(S0,4)}, {v(vL16)}, {s(rWS,4)}, {s(sPS)} offen sc1', 'p')
    vm(f'buffer_store_dwordx2 {v(S0+4,2)}, {v(vH8)}, {s(rWS,4)}, {s(sPS)} offen offset:1024 sc1', 'p')
    st(2)
    if pre_f: pre_f(lambda t_: vm(t_, 'wo'), 0)
    vwait('q2')
    st(9)
    a('s_barrier')
    st(10)
    st(3)
    a(f's_mul_i32 {s(sT0)}, {s(sHG)}, {16*6144}')
    a(f's_mul_i32 {s(sT1)}, {s(sW)}, 1536')
    a(f's_add_u32 {s(sT0)}, {s(sT0)}, {s(sT1)}')
    a(f's_add_u32 {s(sT0)}, {s(sT0)}, {WS_P:#x}')
    a(f'v_add_u32 v31, 6144, {v(vL16)}')
    PA = 96
    def pload(p, fn):
        d = PA + 12 * p
        a(f's_add_u32 {s(sT1)}, {s(sT0)}, {12288*p}')
        fn(f'buffer_load_dwordx4 {v(d,4)}, {v(vL16)}, {s(rWS,4)}, {s(sT1)} offen sc1')
        fn(f'buffer_load_dwordx4 {v(d+4,4)}, v31, {s(rWS,4)}, {s(sT1)} offen sc1')
        fn(f'buffer_load_dwordx4 {v(d+8,4)}, {v(vHP)}, {s(rWS,4)}, {s(sT1)} offen offset:1024 sc1')
    def pcheck(p):
        d = PA + 12 * p
        for i in range(4): a(f'v_max3_u32 v{64+i}, {v(d+3*i)}, {v(d+3*i+1)}, {v(d+3*i+2)}')
        a('v_max3_u32 v64, v64, v65, v66')
        a('v_max_u32 v64, v64, v67')
        a('v_cmp_eq_u32 vcc, -1, v64')
    def ploads(ps):
        a(f's_mul_i32 {s(sT0)}, {s(sHG)}, {16*6144}')
        a(f's_mul_i32 {s(sT1)}, {s(sW)}, 1536')
        a(f's_add_u32 {s(sT0)}, {s(sT0)}, {s(sT1)}')
        a(f's_add_u32 {s(sT0)}, {s(sT0)}, {WS_P:#x}')
        for p in ps:
            if p == P3: a('s_barrier')
            pload(p, lambda t: vm(t, ('p', p)))
    def oflag():
        if tail:
            a(f's_lshl_b32 {s(sOM)}, {s(sRB)}, 4')
            piece_addr(a, vFL, 13, s(sOM), 16)
            a(f's_mov_b32 {s(sOM)}, {WS_FP:#x}')
            vm(f'buffer_load_dwordx2 {v(vF,2)}, {v(vFL)}, {s(rWS,4)}, {s(sOM)} offen sc1', 'of')
    def gate_fin():
        add2(GA, GA, GA+2, 'add')
        a(f'v_add_f32 {v(GA)}, {v(GA)}, {v(GA+1)}')
        for sh in (1, 2, 4, 8): a(f'v_add_f32_dpp {v(GA)}, {v(GA)}, {v(GA)} row_ror:{sh} row_mask:0xf bank_mask:0xf')
        g = v(GA)
        a(f'v_cvt_pk_bf16_f32 {g}, {g}, {g}')
        a(f'v_lshlrev_b32 {g}, 16, {g}')
        a(f'v_mul_f32 {g}, {f32(-math.log2(math.e))}, {g}')
        a(f'v_exp_f32 {g}, {g}')
        a(f'v_add_f32 {g}, 1.0, {g}')
        a(f'v_rcp_f32 {g}, {g}')
        a(f'v_cvt_pk_bf16_f32 {g}, {g}, {g}')
        a(f'v_lshlrev_b32 {g}, 16, {g}')
        a(f's_mov_b32 {s(sT1)}, {WS_G:#x}')
        vm(f'buffer_store_dword {g}, {v(vGS)}, {s(rWS,4)}, {s(sT1)} offen sc1', 'g')
    for step in ORD:
        if step == 'g': gate_fin()
        elif step == 'o': oflag()
        elif step == 'w': pre_f and pre_f(lambda t_: vm(t_, 'wo'), 1)
        elif step == 'p': ploads(range(8))
        elif step == 'a': ploads(range(4))
        elif step == 'b': ploads(range(4, 8))
    a(f's_mov_b32 {s(sI)}, 0')
    st(6)
    for p in range(8):
        d = PA + 12 * p
        vwait(('p', p))
        pcheck(p)
        a(f's_mov_b32 {s(sP0)}, {p}')
        a(f's_cbranch_vccnz {L}_slow')
        a.label(f'{L}_ok{p}')
        for q in range(2): add2(d+2*q, d+2*q, d+4+2*q, 'add')
        if p:
            for q in range(2): add2(PA+8+2*q, PA+8+2*q, d+8+2*q, 'add')
            for q in range(2): add2(PA+2*q, PA+2*q, d+2*q, 'add')
    for q in range(2): a(f'v_permlane32_swap_b32 {v(PA+8+q)}, {v(PA+10+q)}')
    for q in range(2): a(f'v_cvt_pk_bf16_f32 {v(PA+q)}, {v(PA+2*q)}, {v(PA+2*q+1)}')
    add2(PA+8, PA+8, PA+10, 'add')
    a(f'ds_write_b64 {v(vO1)}, {v(PA,2)}')
    a(f'v_cvt_pk_bf16_f32 {v(PA+2)}, {v(PA+8)}, {v(PA+9)}')
    a(f'ds_write_b32 {v(vD0)}, {v(PA+2)}')
    if tail:
        a(f's_mov_b32 {s(sOR)}, 0')
        if 'of' in fifo: vwait('of')
        a.label(f'{L}_of')
        a(f'v_cmp_ne_u64 vcc, {v(vF,2)}, {v(vTAG,2)}')
        a(f's_cbranch_vccz {L}_ofok')
        a(f'buffer_load_dwordx2 {v(vF,2)}, {v(vFL)}, {s(rWS,4)}, {s(sOM)} offen sc1')
        a(f's_add_u32 {s(sOR)}, {s(sOR)}, 1')
        a(f's_cmp_lt_u32 {s(sOR)}, {SPIN}')
        a('s_waitcnt vmcnt(0)')
        a(f's_cbranch_scc1 {L}_of')
        a.label(f'{L}_ofok')
        st.value(11, s(sOR))
    if pre_f: pre_f(a, 2)
    a('s_waitcnt lgkmcnt(0)')
    st(12)
    if not DBG: st.value(13, s(sI))
    a('s_barrier')
    if tail: tail()
    else:
        st.flush()
        a('s_endpgm')
    a.label(f'{L}_slow')
    a('s_waitcnt vmcnt(0)')
    a(f's_mov_b32 {s(sT2)}, 0')
    for p in range(8):
        pcheck(p)
        a(f's_cbranch_vccz {L}_sl{p}')
        pload(p, a)
        a(f's_mov_b32 {s(sT2)}, 1')
        a.label(f'{L}_sl{p}')
    a(f's_add_u32 {s(sI)}, {s(sI)}, 1')
    a(f's_cmp_lt_u32 {s(sI)}, {SPIN}')
    a(f's_cselect_b32 {s(sT2)}, {s(sT2)}, 0')
    a(f's_cmp_lg_u32 {s(sT2)}, 0')
    a(f's_cbranch_scc1 {L}_slow')
    a('s_waitcnt vmcnt(0)')
    for p in range(7):
        a(f's_cmp_eq_u32 {s(sP0)}, {p}')
        a(f's_cbranch_scc1 {L}_ok{p}')
    a(f's_branch {L}_ok7')
```
